```python
import torch

def _softmax(x, axis=-1):
    return torch.softmax(x, dim=axis)
def _gelu(x):
    return torch.nn.functional.gelu(x, approximate="tanh")
def _silu(x):
    return torch.nn.functional.silu(x)
def _sigmoid(x):
    return torch.sigmoid(x)
def _layernorm(x, axis=-1, eps=1e-5):
    m = x.mean(dim=axis, keepdim=True)
    v = x.var(dim=axis, keepdim=True, unbiased=False)
    return (x - m) / torch.sqrt(v + eps)
def _scatter_add(tgt, idx, src, axis=0):
    return tgt.clone().index_add_(axis, idx, src)
def _segment_sum(src, seg, n):
    out = torch.zeros((n,) + src.shape[1:], dtype=src.dtype)
    return out.index_add_(0, seg, src)
def _pad(x, pw):
    flat = tuple(v for pair in reversed(pw) for v in pair)
    return torch.nn.functional.pad(x, flat)

kernel_name = 'standalone__kv_cache_quant_int4_int2_kv_with_per_channel_or_per_token_scales__prompt'

def setup_inputs():

    _w = (lambda a: (lambda t: t.to(torch.bfloat16) if t.is_floating_point() else t)(torch.as_tensor(a)))
    B = 1
    Sq = 2048
    Skv = 2048
    Hq = 32
    Hkv = 32
    Dh = 128
    bits = 2
    G = 64
    if G <= 0 or G >= Skv:
        G = max(1, Skv // 2)
    Skv = (Skv // G) * G
    ngk = Skv // G
    qmax = (1 << bits) - 1
    return {
        "q": _w((lambda *s: torch.randn(*s, dtype=torch.bfloat16) * 1.6)(B, Hq, Sq, Dh)),
        "qk": _w(torch.randint(0, qmax + 1, (B, Hkv, Skv, Dh)).to(torch.int32)),
        "qv": _w(torch.randint(0, qmax + 1, (B, Hkv, Skv, Dh)).to(torch.int32)),
        "k_scales": _w(torch.abs((lambda *s: torch.randn(*s, dtype=torch.bfloat16) * 1.6)(B, Hkv, ngk, Dh)) * 0.05 + 0.02),
        "k_zeros": _w((lambda *s: torch.randn(*s, dtype=torch.bfloat16) * 1.6)(B, Hkv, ngk, Dh) + float(qmax) / 2.0),
        "v_scales": _w(torch.abs((lambda *s: torch.randn(*s, dtype=torch.bfloat16) * 0.05)(B, Hkv, Skv, 1)) * 0.05 + 0.02),
        "v_zeros": _w((lambda *s: torch.randn(*s, dtype=torch.bfloat16) * 0.05)(B, Hkv, Skv, 1) + float(qmax) / 2.0),
    }

def reference(q, qk, qv, k_scales, k_zeros, v_scales, v_zeros):
    B, Hq, Sq, Dh = q.shape
    Hkv, Skv = qk.shape[1], qk.shape[2]
    ngk = k_scales.shape[2]
    G = Skv // ngk
    ks = (lambda x, n, axis: torch.repeat_interleave(x, n, dim=axis))(k_scales, G, axis=2)
    kz = (lambda x, n, axis: torch.repeat_interleave(x, n, dim=axis))(k_zeros, G, axis=2)
    k = ((lambda x, dt: x.to(dt))(qk, q.dtype) - kz) * ks
    v = ((lambda x, dt: x.to(dt))(qv, q.dtype) - v_zeros) * v_scales
    rep = Hq // Hkv
    if rep > 1:
        k = (lambda x, n, axis: torch.repeat_interleave(x, n, dim=axis))(k, rep, axis=1)
        v = (lambda x, n, axis: torch.repeat_interleave(x, n, dim=axis))(v, rep, axis=1)
    scale = float(Dh) ** -0.5
    logits = torch.einsum("bhqd,bhkd->bhqk", q, k) * scale
    p = _softmax(logits, axis=-1)
    o = torch.einsum("bhqk,bhkd->bhqd", p, v)
    return o
```

```python
import re


def regs(spec):
    spec = spec.strip()
    neg = spec.startswith('-')
    if neg:
        spec = spec[1:]
    if spec.startswith('|') and spec.endswith('|'):
        spec = spec[1:-1]
    m = re.fullmatch(r'([vas])\[(\d+):(\d+)\]', spec)
    if m:
        return [m.group(1) + str(i) for i in range(int(m.group(2)), int(m.group(3)) + 1)]
    m = re.fullmatch(r'([vas])(\d+)', spec)
    if m:
        return [spec]
    if spec in ('vcc', 'm0', 'exec', 'scc'):
        return [spec]
    return []


def R(kind, base, n=1):
    return f"{kind}{base}" if n == 1 else f"{kind}[{base}:{base + n - 1}]"


def V(b, n=1): return R('v', b, n)
def A(b, n=1): return R('a', b, n)
def S(b, n=1): return R('s', b, n)


TRANS = ('v_exp_f32', 'v_log_f32', 'v_rcp_f32', 'v_rsq_f32', 'v_sqrt_f32')


class I:
    def __init__(self, text, tag=None):
        self.text = text
        self.tag = tag
        self.pre_barrier = False
        self.parse()

    def parse(self):
        t = self.text.split(';')[0].strip()
        if t.endswith(':') or t.startswith('.') or t == '':
            self.op = 'label'
            self.kind = 'label'
            self.rd, self.wr = [], []
            return
        sp = t.split(None, 1)
        op = sp[0]
        rest = sp[1] if len(sp) > 1 else ''
        ops, depth, cur = [], 0, ''
        for ch in rest:
            if ch in '[(':
                depth += 1
            if ch in '])':
                depth -= 1
            if ch == ',' and depth == 0:
                ops.append(cur.strip())
                cur = ''
            else:
                cur += ch
        if cur.strip():
            ops.append(cur.strip())
        mods = ''
        if ops:
            l = ops[-1].split(None, 1)
            ops[-1] = l[0]
            mods = l[1] if len(l) > 1 else ''
        self.op, self.ops, self.mods = op, ops, mods
        rd, wr = [], []
        kind = None
        self.srcc = []
        if op.startswith('v_mfma'):
            kind = 'mfma'
            wr = regs(ops[0])
            self.srca, self.srcb, self.srcc = regs(ops[1]), regs(ops[2]), regs(ops[3])
            rd = self.srca + self.srcb + self.srcc
            self.passes = 4 if '16x16x32' in op else 8
        elif op.startswith('v_'):
            kind = 'valu'
            if op.startswith('v_cmp'):
                wr = regs(ops[0])
                rd = sum((regs(o) for o in ops[1:]), [])
            elif op.startswith('v_permlane') or op.startswith('v_swap'):
                wr = regs(ops[0]) + regs(ops[1])
                rd = list(wr)
            else:
                wr = regs(ops[0])
                rd = sum((regs(o) for o in ops[1:]), [])
                if op.startswith('v_fmac') or op.startswith('v_dot2c') or '_dpp' in op:
                    rd += wr
            if op == 'v_nop':
                rd, wr = [], []
        elif op.startswith('ds_read') or op.startswith('ds_bpermute'):
            kind = 'ds'
            wr = regs(ops[0])
            rd = sum((regs(o) for o in ops[1:]), [])
        elif op.startswith('ds_write_addtid'):
            kind = 'ds'
            rd = regs(ops[0]) + ['m0']
        elif op.startswith('ds_'):
            kind = 'ds'
            rd = sum((regs(o) for o in ops), [])
        elif op.startswith('global_load') or op.startswith('buffer_load'):
            kind = 'vmem'
            wr = regs(ops[0])
            rd = sum((regs(o) for o in ops[1:]), [])
        elif op.startswith('global_store') or op.startswith('buffer_store') or op.startswith('global_atomic'):
            kind = 'vmem'
            rd = sum((regs(o) for o in ops), [])
        elif op.startswith('s_load') or op in ('s_memtime', 's_memrealtime'):
            kind = 'smem'
            wr = regs(ops[0])
            rd = sum((regs(o) for o in ops[1:]), [])
        elif op == 's_waitcnt':
            kind = 'wait'
        elif op == 's_nop':
            kind = 'nop'
        elif op == 's_barrier':
            kind = 'barrier'
        elif op.startswith('s_cbranch') or op == 's_branch' or op == 's_endpgm':
            kind = 'branch'
            if 'scc' in op:
                rd = ['scc']
            if 'vcc' in op:
                rd = ['vcc']
        elif op.startswith('s_cmp'):
            kind = 'salu'
            wr = ['scc']
            rd = sum((regs(o) for o in ops), [])
        elif op.startswith('s_'):
            kind = 'salu'
            if op in ('s_setprio', 's_sleep') or op.startswith('s_setreg'):
                pass
            else:
                wr = regs(ops[0])
                rd = sum((regs(o) for o in ops[1:]), [])
                if op.startswith(('s_add', 's_sub', 's_and', 's_or', 's_xor', 's_lshl', 's_lshr', 's_min', 's_max', 's_bfe')):
                    wr = wr + ['scc']
                if op.startswith(('s_addc', 's_subb', 's_cselect')):
                    rd = rd + ['scc']
        else:
            raise Exception("unknown op " + t)
        self.kind, self.rd, self.wr = kind, rd, wr

    def states(self):
        if self.kind == 'label':
            return 0
        if self.kind == 'nop':
            return int(self.ops[0]) + 1
        return 1

    def __repr__(self):
        return self.text


class Slot(I):
    def __init__(self):
        self.text = ''
        self.tag = 'slot'
        self.op = 'slot'
        self.kind = 'slot'
        self.rd, self.wr = [], []
        self.vm = None
        self.lgkm = None
        self.pre_barrier = False

    def active(self):
        return self.vm is not None or self.lgkm is not None

    def states(self):
        return 1 if self.active() else 0

    def render(self):
        p = []
        if self.vm is not None:
            p.append(f"vmcnt({self.vm})")
        if self.lgkm is not None:
            p.append(f"lgkmcnt({self.lgkm})")
        return "s_waitcnt " + " ".join(p)


def parse_wait(ins):
    if ins.kind == 'slot':
        return ins.vm, ins.lgkm
    vm = re.search(r'vmcnt\((\d+)\)', ins.text)
    lg = re.search(r'lgkmcnt\((\d+)\)', ins.text)
    return (int(vm.group(1)) if vm else None), (int(lg.group(1)) if lg else None)


def place_waits(trace, fix=True):
    changes = 0
    cnt = {'vm': 0, 'lg': 0}
    done = {'vm': 0, 'lg': 0}
    pend = {}
    prebar = -1
    smem_pending = False
    slots = []
    for pos, ins in enumerate(trace):
        if ins.kind in ('slot', 'wait'):
            if ins.kind == 'slot':
                slots.append((ins, cnt['vm'], cnt['lg']))
            vm, lg = parse_wait(ins)
            if vm is not None:
                done['vm'] = max(done['vm'], cnt['vm'] - vm)
            if lg is not None:
                if smem_pending and lg != 0:
                    pass
                else:
                    done['lg'] = max(done['lg'], cnt['lg'] - lg)
                    if lg == 0:
                        smem_pending = False
            continue
        need = []
        for r in ins.rd + ins.wr:
            if r in pend:
                need.append(pend[r])
        if ins.kind == 'barrier' and prebar >= 0:
            need.append(('lg', prebar, False))
        for cls, idx, is_smem in need:
            if idx < done[cls]:
                continue
            if not fix:
                raise Exception(f"uncovered dependency at trace pos {pos}: {ins.text} ({cls} {idx})")
            if not slots:
                raise Exception("no slot for " + ins.text)
            sl, cvm, clg = slots[-1]
            c = cvm if cls == 'vm' else clg
            if c <= idx:
                raise Exception(f"no slot between producer and consumer: {ins.text}")
            n = c - idx - 1
            if cls == 'lg' and (is_smem or smem_pending):
                n = 0
            n = min(n, 63 if cls == 'vm' else 15)
            if cls == 'vm':
                sl.vm = n if sl.vm is None else min(sl.vm, n)
            else:
                sl.lgkm = n if sl.lgkm is None else min(sl.lgkm, n)
            done[cls] = max(done[cls], c - n)
            if cls == 'lg' and n == 0 and c == cnt['lg']:
                smem_pending = False
            changes += 1
        for r in ins.rd + ins.wr:
            pend.pop(r, None)
        if ins.kind == 'barrier':
            prebar = -1
        if ins.kind == 'vmem':
            for r in ins.wr:
                pend[r] = ('vm', cnt['vm'], False)
            cnt['vm'] += 1
        elif ins.kind == 'ds':
            for r in ins.wr:
                pend[r] = ('lg', cnt['lg'], False)
            if ins.pre_barrier:
                prebar = cnt['lg']
            cnt['lg'] += 1
        elif ins.kind == 'smem':
            for r in ins.wr:
                pend[r] = ('lg', cnt['lg'], True)
            cnt['lg'] += 1
            smem_pending = True
    return changes


def required_states(p, c):
    need = 0
    pw, cr, cw = set(p.wr), set(c.rd), set(c.wr)
    if p.kind == 'valu':
        vw = {r for r in pw if r[0] in 'va' and r != 'vcc'}
        sw = pw - vw
        if c.kind == 'mfma' and vw & cr:
            need = max(need, 2)
        if c.kind == 'valu':
            if p.op.replace('_e32', '').replace('_e64', '') in TRANS and c.op not in TRANS and vw & cr:
                need = max(need, 1)
            if c.op.startswith('v_permlane') and vw & cr:
                need = max(need, 2)
            if '_dpp' in c.op and vw & cr:
                need = max(need, 2)
            if c.op.startswith(('v_readfirstlane', 'v_readlane')) and vw & cr:
                need = max(need, 1)
            if sw & cr:
                need = max(need, 2)
        if c.kind == 'vmem' and sw & cr:
            need = max(need, 5)
        if c.kind in ('salu', 'branch') and sw & cr:
            need = max(need, 1)
    if p.kind == 'mfma':
        k = {4: 0, 8: 1}[p.passes]
        if c.kind == 'mfma':
            if pw & set(c.srca + c.srcb):
                need = max(need, (8, 12)[k])
            if pw & set(c.srcc):
                if not (list(p.wr) == list(c.srcc) and p.passes == c.passes):
                    need = max(need, (6, 10)[k])
            elif pw & cw and list(p.wr) != list(c.wr):
                need = max(need, (6, 10)[k])
        elif c.kind in ('valu', 'ds', 'vmem'):
            if pw & (cr | cw):
                need = max(need, (8, 12)[k])
            if c.kind == 'valu' and set(p.srcc) & cw:
                need = max(need, (3, 7)[k])
    if p.kind == 'salu' and 'm0' in pw and c.kind in ('ds', 'vmem') and 'm0' in cr:
        need = max(need, 1)
    if p.kind == 'vmem' and ('store' in p.op) and ('x4' in p.op or 'x3' in p.op):
        data = set(regs(p.ops[1] if p.op.startswith('global') else p.ops[0]))
        if data & cw:
            need = max(need, 2)
    return need


def check_hazards(trace):
    bad = []
    for i, c in enumerate(trace):
        if c.kind in ('label', 'slot', 'wait', 'nop'):
            continue
        dist = 0
        j = i - 1
        while j >= 0 and dist < 20:
            p = trace[j]
            if p.kind not in ('label', 'slot', 'wait', 'nop'):
                n = required_states(p, c)
                if n > dist:
                    bad.append((i, p, c, dist, n))
            dist += p.states()
            j -= 1
    return bad


def fix_hazards_linear(code):
    i = 0
    while i < len(code):
        c = code[i]
        if c.kind in ('label', 'slot', 'wait', 'nop'):
            i += 1
            continue
        dist, j, short = 0, i - 1, 0
        while j >= 0 and dist < 20:
            p = code[j]
            if p.kind not in ('label', 'slot', 'wait', 'nop'):
                short = max(short, required_states(p, c) - dist)
            dist += 0 if p.kind == 'slot' else p.states()
            j -= 1
        if short > 0:
            code.insert(i, I(f"s_nop {short - 1}"))
            i += 1
        i += 1


def render(code):
    out = []
    for ins in code:
        if ins.kind == 'slot':
            if ins.active():
                out.append("    " + ins.render())
        elif ins.kind == 'label':
            out.append(ins.text)
        else:
            out.append("    " + ins.text)
    return "\n".join(out) + "\n"


def issue_cycles(code):
    t = 0
    last_m = -100
    prev = None
    for ins in code:
        k = ins.kind
        if k == 'label' or (k == 'slot' and not ins.active()):
            continue
        if k == 'mfma':
            t = max(t, last_m + (16 if ins.passes == 4 else 32))
            last_m = t
            t += 4
        elif k in ('salu', 'wait', 'slot', 'barrier', 'branch', 'smem'):
            t += 4
        elif k == 'nop':
            t += 4 * ins.states()
        else:
            t = max(t, last_m + 8)
            if k == 'valu':
                if ins.op.startswith('v_pk_') and 'f32' in ins.op:
                    t = max(t, last_m + 28)
                t += 8 if (ins.op in TRANS or ins.op.startswith('v_permlane')) else 4
            else:
                if prev == 'valu':
                    t += 8
                nv = len([r for r in ins.rd if r[0] in 'va' and r != 'vcc'])
                t += 4 * max(nv, 1)
                if ins.op.startswith('buffer'):
                    t += 4
        prev = k
    return t
```

```python
import sys, struct, math, argparse
from asmlib import *

NAME = "standalone__kv_cache_quant_int4_int2_kv_with_per_channel_or_per_token_scales__prompt"


def f2u(x):
    return struct.unpack('<I', struct.pack('<f', x))[0]


KSZ = 17408
VB = 2 * KSZ
VSZ = 16512
TB = VB + 2 * VSZ
REC = 1792
FLAG = TB + 32 * REC
LDS_BYTES = FLAG + 64
vG, vKR, vVR, vVW, vKC, vCT, vXB = 1, 2, 3, 4, 5, 6, 7
vBAD = 8
vT = 10
XB0 = 56
S0, P0, KS0, VS0, VP0, CI0, KC0 = 64, 128, 160, 192, 224, 240, 248
O0, X0, Q0, KF0, VF0 = 0, 128, 144, 208, 240
sQ, sK, sV, sKS, sKZ, sVS, sVZ, sO = 4, 6, 8, 10, 12, 14, 16, 18
sH, sQB, sW, sCNT, sPK, sINC, sT0, sT1 = 20, 21, 22, 23, 24, 25, 26, 27
sK0, sV0 = 28, 30
sC0 = 32

CSC = math.log2(math.e) / math.sqrt(128.0)
SIG = 32
POFF = 64


def Sreg(tb, qb): return S0 + (tb * 4 + qb) * 4
def Preg(qb, kk): return P0 + (qb * 2 + kk) * 4
def Oreg(db, qb): return O0 + (db * 4 + qb) * 4
def Qreg(qb, ks): return Q0 + (qb * 4 + ks) * 4
def KF(buf, ks): return KF0 + (buf * 4 + ks) * 4
def VF(buf, kk): return VF0 + (buf * 2 + kk) * 4


MF = "v_mfma_f32_16x16x32_bf16"


def lds(ins):
    ins.pre_barrier = True
    return ins


def k_read(buf, tb, ks, dst):
    off = buf * KSZ + (tb // 2) * 8704 + (tb % 2) * 2176 + 16 * ks
    return lds(I(f"ds_read_b128 {dst}, {V(vKR)} offset:{off}"))


def v_read(buf, db, kk, dst):
    off = buf * VSZ + (db * 2 + kk) * 1024 + (db // 4) * 64
    return lds(I(f"ds_read_b128 {dst}, {V(vVR)} offset:{off}"))


def k_write(buf, e, p, src):
    off = buf * KSZ + ((e // 4) * 2 + p) * 1088 + (e % 4) * 272
    return lds(I(f"ds_write_addtid_b32 {V(src)} offset:{off}"))


def v_write(buf, j, src):
    return lds(I(f"ds_write_b128 {V(vVW)}, {V(src, 4)} offset:{buf * VSZ + j * 2048}"))


def gap_pattern(opt):
    g = [[] for _ in range(136)]
    memA = (['Kf'] * 4 + ['Ci'] + ['gV'] * 3) * 2 + ['Kf'] * 4 + ['Ci'] + ['gV'] * 2 + ['Kc'] + ['Vf'] * 4 + ['Kc', 'Ad']
    mi = 0
    for c in range(16):
        n = 4 * c
        other = ['Vp', 'Vp'] if c < 4 else ['E']
        if c < 15:
            g[n + 0] = [memA[mi], 'C']
            g[n + 1] = list(other)
            g[n + 2] = [memA[mi + 1], 'C']
            g[n + 3] = list(other)
            mi += 2
        else:
            for k in range(4):
                g[n + k] = ['E']
    B = [None] * 72
    B[0] = ['Xb', 'Xb']
    for b in range(1, 7):
        B[8 * b] = ['Vf', 'Vf']
    grp = [['W', 'Kp', 'Kp', 'Kp', 'Kp'], ['Kv', 'Kv'], ['a', 'Kv'], ['a', 'Kv'], ['gK', 'a'], ['a', 'gK']]
    for t, start in enumerate((1, 13, 25, 37)):
        m = start
        for k, x in enumerate(grp):
            while B[m] is not None:
                m += 1
            if k == 0:
                assert m % 2 == 1
            B[m] = list(x)
            m += 2 if k != 0 else 1
    B[56] = ['BAR', 'Kf', 'Kf']
    B[57] = ['Kf', 'Kf']
    B[58] = ['Ci', 'Ad']
    B[66] = ['C', 'C']
    for m in range(72):
        if B[m] is None:
            B[m] = ['E']
    ne = sum(x.count('E') for x in g) + sum(x.count('E') for x in B)
    m = 71
    while ne < 64:
        B[m].append('E')
        ne += 1
        m -= 2
    assert ne == 64
    B[69].append('Ad')
    for m in range(72):
        g[64 + m] = B[m]
    return g


class TabState:
    def __init__(self, base):
        self.base = {vKC: base, vCT: base, vXB: base}


def iteration(i, tab, opt, loop=False):
    doQK = i + 1 <= 31
    doPV = i >= 0
    doK = i + 2 <= 31
    doV = i + 1 <= 31
    ldK = i + 3 <= 31 or loop
    ldV = i + 2 <= 31
    kb = (i + 1) % 2
    vb = i % 2
    st = {}
    st['E'] = [I(f"v_exp_f32 {V(S0 + r)}, {V(S0 + r)}") if doQK else None for r in range(64)]

    def cvt(c, h):
        tb, qb = c // 4, c % 4
        return I(f"v_cvt_pk_bf16_f32 {V(Preg(qb, tb // 2) + 2 * (tb % 2) + h)}, {V(Sreg(tb, qb) + 2 * h)}, {V(Sreg(tb, qb) + 2 * h + 1)}")
    st['C'] = [cvt(c, h) if doPV else None for c in range(1, 16) for h in range(2)] + [cvt(0, h) if doQK else None for h in range(2)]
    st['Kf'] = [k_read(kb, tb, ks, A(KF(tb % 2, ks), 4)) if doQK else None for tb in (1, 2, 3) for ks in range(4)] + \
               [k_read(i % 2, 0, ks, A(KF(0, ks), 4)) if doK else None for ks in range(4)]
    st['Vf'] = [v_read(vb, db, kk, A(VF(db % 2, kk), 4)) if doPV else None for db in range(8) for kk in range(2)]
    st['Ci'] = [(vCT, i + 1, (tb // 2) * 128 + (tb % 2) * 16, CI0 + 4 * (tb % 2)) if doQK else None for tb in (1, 2, 3)] + \
               [(vCT, i + 2, 0, CI0) if doK else None]
    st['Kc'] = [(vKC, i + 2, 512 * h, KC0 + 4 * h) if doK else None for h in range(2)]
    st['Xb'] = [(vXB, i, 256 * kk, XB0 + 4 * kk) if doPV else None for kk in range(2)]
    st['Vp'] = [I(f"v_fma_f32 {V(VP0 + 4 * j + p)}, {V(VS0 + 4 * (2 * p + 1) + j)}, {S(sPK)}, {V(VS0 + 4 * (2 * p) + j)}") if doV else None
                for p in range(4) for j in range(4)]
    st['W'] = [v_write((i + 1) % 2, j, VP0 + 4 * j) if doV else None for j in range(4)]
    st['gV'] = [I(f"global_load_dwordx4 {V(VS0 + 4 * e, 4)}, {V(vG)}, {S(sV, 2)} offset:{512 * e}") if ldV else None for e in range(8)]
    st['gK'] = [I(f"global_load_dwordx4 {V(KS0 + 4 * e, 4)}, {V(vG)}, {S(sK, 2)} offset:{512 * e}") if ldK else None for e in range(8)]
    st['Kp'] = [I(f"v_pk_fma_f32 {V(KS0 + 4 * e + 2 * p, 2)}, {V(KS0 + 4 * e + 2 * p, 2)}, {V(KC0 + 2 * p, 2)}, {V(KC0 + 4 + 2 * p, 2)}") if doK else None
                for e in range(8) for p in range(2)]
    st['Kv'] = [I(f"v_cvt_pk_bf16_f32 {V(KS0 + 4 * e + 2 * p)}, {V(KS0 + 4 * e + 2 * p)}, {V(KS0 + 4 * e + 2 * p + 1)}") if doK else None
                for e in range(8) for p in range(2)]
    st['a'] = [k_write(i % 2, e, p, KS0 + 4 * e + 2 * p) if doK else None for e in range(8) for p in range(2)]
    st['BAR'] = [I("s_barrier") if (doK or doV) else None]
    adv = (i % 2 == 1) and i < 30
    st['Ad'] = [r if adv else None for r in (vKC, vXB, vCT)]
    mf = []
    for n in range(64):
        tb, qb, ks = n // 16, (n // 4) % 4, n % 4
        c = V(CI0 + 4 * (tb % 2), 4) if ks == 0 else V(Sreg(tb, qb), 4)
        mf.append(I(f"{MF} {V(Sreg(tb, qb), 4)}, {A(KF(tb % 2, ks), 4)}, {A(Qreg(qb, ks), 4)}, {c}") if doQK else None)
    for m in range(72):
        blk, qb, kk = m // 8, (m // 2) % 4, m % 2
        d = A(Oreg(blk, qb), 4) if blk < 8 else A(X0 + 4 * qb, 4)
        b = A(VF(blk % 2, kk), 4) if blk < 8 else V(XB0 + 4 * kk, 4)
        mf.append(I(f"{MF} {d}, {V(Preg(qb, kk), 4)}, {b}, {d}") if doPV else None)
    salu = []
    if ldV:
        salu.append((48, 130, [f"s_add_u32 {S(sV)}, {S(sV)}, 0x8000", f"s_addc_u32 {S(sV + 1)}, {S(sV + 1)}, 0"]))
    if ldK:
        if loop and i % 2 == 1:
            salu.append((2, 60, [f"s_cmp_eq_u32 {S(sCNT)}, 1", f"s_cselect_b32 {S(sINC)}, 0, 0x8000",
                                 f"s_add_u32 {S(sK)}, {S(sK)}, {S(sINC)}", f"s_addc_u32 {S(sK + 1)}, {S(sK + 1)}, 0"]))
        else:
            salu.append((2, 60, [f"s_add_u32 {S(sK)}, {S(sK)}, 0x8000", f"s_addc_u32 {S(sK + 1)}, {S(sK + 1)}, 0"]))
    if loop and i % 2 == 1:
        salu.append((124, 134, [f"s_sub_u32 {S(sCNT)}, {S(sCNT)}, 1", f"s_cmp_lg_u32 {S(sCNT)}, 0"]))
    pat = gap_pattern(opt)
    pos = {k: 0 for k in st}
    gaps = []
    for n in range(136):
        g = []
        for k in pat[n]:
            x = st[k][pos[k]]
            pos[k] += 1
            if x is None:
                continue
            if k in ('Ci', 'Kc', 'Xb'):
                reg, tile, off, dst = x
                x = I(f"ds_read_b128 {V(dst, 4)}, {V(reg)} offset:{(tile - tab.base[reg]) * REC + off}")
            elif k == 'Ad':
                tab.base[x] += 2
                x = I(f"v_add_u32 {V(x)}, {2 * REC}, {V(x)}")
            g.append(x)
        gaps.append(g)
    for k in st:
        assert pos[k] == len(st[k]), (k, pos[k], len(st[k]))
    return mf, gaps, salu


class Iter:
    def __init__(self, i, tab, opt, loop=False):
        self.mf, self.gaps, self.salu = iteration(i, tab, opt, loop)
        self.slots = [Slot() for _ in range(136)]
        self.extra = [[] for _ in range(136)]
        self.loop = loop

    def code(self):
        out = []
        for n in range(136):
            if self.mf[n] is not None:
                out.append(self.mf[n])
            g = self.gaps[n]
            if g and g[0].kind == 'barrier':
                out += g
            else:
                out.append(self.slots[n])
                out += self.extra[n]
                out += g
        return out

    def place_salu(self):
        busy = [self.slots[n].active() or (self.gaps[n] and self.gaps[n][0].kind == 'barrier') for n in range(136)]
        lo_all = 0
        for lo, hi, lst in sorted(self.salu):
            n = max(lo, lo_all)
            for t in lst:
                while busy[n]:
                    n += 1
                assert n <= hi, (lo, hi, lst)
                self.extra[n].append(I(t))
                busy[n] = True
            lo_all = n


class Lin:
    def __init__(self):
        self.c = []

    def __call__(self, t):
        for line in t.strip().split('\n'):
            line = line.strip()
            if line:
                self.c.append(I(line))
        return self.c[-1]

    def slot(self):
        self.c.append(Slot())

    def add(self, ins):
        self.c.append(ins)


def load_q(e, base):
    for qb in range(4):
        for ks in range(4):
            e(f"global_load_dwordx4 {V(base + (qb * 4 + ks) * 4, 4)}, {V(vT + qb // 2)}, {S(sQ, 2)} offset:{(qb % 2) * 4096 - 4096 + 32 * ks}")


def q_addr(e):
    t = vT + 2
    e(f"""
    v_and_b32 {V(t)}, 3, v0
    v_lshlrev_b32 {V(t)}, 10, {V(t)}
    v_bfe_u32 {V(t + 1)}, v0, 2, 2
    v_lshl_add_u32 {V(t)}, {V(t + 1)}, 8, {V(t)}
    v_bfe_u32 {V(t + 1)}, v0, 4, 1
    v_lshl_add_u32 {V(t)}, {V(t + 1)}, 7, {V(t)}
    v_bfe_u32 {V(t + 1)}, v0, 5, 1
    v_lshl_add_u32 {V(t)}, {V(t + 1)}, 4, {V(t)}
    v_lshrrev_b32 {V(t + 1)}, 6, v0
    v_lshl_add_u32 {V(t)}, {V(t + 1)}, 14, {V(t)}
    v_add_u32 {V(vT)}, 0x1000, {V(t)}
    v_add_u32 {V(vT + 1)}, 0x3000, {V(t)}
    """)


def fix_q(e, base, scale):
    for f in range(16):
        b = base + 4 * f
        e.slot()
        if scale:
            for k in range(4):
                e(f"v_add_u32 {V(vT + 2 + k)}, {S(sC0)}, {V(b + k)}")
            for k in range(4):
                e(f"v_bitop3_b32 {V(vT + 6)}, {V(vT + 2 + k)}, {V(b + k)}, {V(vT + 6)} bitop3:0xbe")
            r = vT + 2
        else:
            r = b
        e(f"v_permlane32_swap_b32 {V(r)}, {V(r + 1)}")
        e(f"v_permlane32_swap_b32 {V(r + 2)}, {V(r + 3)}")
        for k, src in enumerate((0, 2, 1, 3)):
            e(f"v_accvgpr_write_b32 {A(Q0 + 4 * f + k)}, {V(r + src)}")


def prologue(opt):
    e = Lin()
    e(f"""
    s_cmp_ge_u32 s2, 256
    s_cbranch_scc1 L_end
    s_load_dwordx16 s[4:19], s[0:1], 0
    """)
    if opt.stamp:
        e("s_load_dwordx2 s[60:61], s[0:1], 72\ns_memrealtime s[62:63]\ns_memtime s[64:65]")
    e(f"""
    s_and_b32 {S(sH)}, s2, 7
    s_lshl_b32 {S(sH)}, {S(sH)}, 2
    s_lshr_b32 {S(sT0)}, s2, 6
    s_add_u32 {S(sH)}, {S(sH)}, {S(sT0)}
    s_bfe_u32 {S(sQB)}, s2, 0x30003
    v_lshrrev_b32 {V(vT)}, 5, v0
    v_and_b32 {V(vT + 1)}, 31, v0
    v_lshlrev_b32 {V(vG)}, 12, {V(vT)}
    v_lshl_add_u32 {V(vG)}, {V(vT + 1)}, 4, {V(vG)}
    v_lshlrev_b32 {V(vT + 2)}, 4, v0
    s_lshl_b32 {S(sT0)}, {S(sH)}, 13
    s_lshl_b32 {S(sT1)}, {S(sH)}, 12
    """)
    e.slot()
    e(f"""
    s_add_u32 {S(sKS)}, {S(sKS)}, {S(sT0)}
    s_addc_u32 {S(sKS + 1)}, {S(sKS + 1)}, 0
    s_add_u32 {S(sKZ)}, {S(sKZ)}, {S(sT0)}
    s_addc_u32 {S(sKZ + 1)}, {S(sKZ + 1)}, 0
    s_add_u32 {S(sVS)}, {S(sVS)}, {S(sT1)}
    s_addc_u32 {S(sVS + 1)}, {S(sVS + 1)}, 0
    s_add_u32 {S(sVZ)}, {S(sVZ)}, {S(sT1)}
    s_addc_u32 {S(sVZ + 1)}, {S(sVZ + 1)}, 0
    v_add_u32 {V(vT + 3)}, 0x1000, {V(vT + 2)}
    """)
    KSA, KZA, VSA, VZA = 16, 24, 32, 36
    e(f"""
    global_load_dwordx4 {V(KSA, 4)}, {V(vT + 2)}, {S(sKS, 2)}
    global_load_dwordx4 {V(KZA, 4)}, {V(vT + 2)}, {S(sKZ, 2)}
    global_load_dwordx4 {V(VSA, 4)}, {V(vT + 2)}, {S(sVS, 2)}
    global_load_dwordx4 {V(VZA, 4)}, {V(vT + 2)}, {S(sVZ, 2)}
    global_load_dwordx4 {V(KSA + 4, 4)}, {V(vT + 3)}, {S(sKS, 2)}
    global_load_dwordx4 {V(KZA + 4, 4)}, {V(vT + 3)}, {S(sKZ, 2)}
    s_lshl_b32 {S(sT0)}, {S(sH)}, 20
    s_add_u32 {S(sK)}, {S(sK)}, {S(sT0)}
    s_addc_u32 {S(sK + 1)}, {S(sK + 1)}, 0
    s_add_u32 {S(sV)}, {S(sV)}, {S(sT0)}
    s_addc_u32 {S(sV + 1)}, {S(sV + 1)}, 0
    """)
    K0 = P0
    for t in range(8):
        e(f"global_load_dwordx4 {V(K0 + 4 * t, 4)}, {V(vG)}, {S(sK, 2)} offset:{512 * t}")
    e(f"""
    s_lshl_b32 {S(sT0)}, {S(sH)}, 3
    s_add_u32 {S(sT0)}, {S(sT0)}, {S(sQB)}
    s_lshl_b32 {S(sT0)}, {S(sT0)}, 16
    s_add_u32 {S(sQ)}, {S(sQ)}, {S(sT0)}
    s_addc_u32 {S(sQ + 1)}, {S(sQ + 1)}, 0
    s_add_u32 {S(sO)}, {S(sO)}, {S(sT0)}
    s_addc_u32 {S(sO + 1)}, {S(sO + 1)}, 0
    s_mov_b64 {S(sK0, 2)}, {S(sK, 2)}
    s_mov_b64 {S(sV0, 2)}, {S(sV, 2)}
    """)
    q_addr(e)
    load_q(e, S0)
    for t in range(8):
        e(f"global_load_dwordx4 {V(VS0 + 4 * t, 4)}, {V(vG)}, {S(sV, 2)} offset:{512 * t}")
    e(f"""
    s_add_u32 {S(sK)}, {S(sK)}, 0x8000
    s_addc_u32 {S(sK + 1)}, {S(sK + 1)}, 0
    s_add_u32 {S(sV)}, {S(sV)}, 0x8000
    s_addc_u32 {S(sV + 1)}, {S(sV + 1)}, 0
    """)
    for t in range(8):
        e(f"global_load_dwordx4 {V(KS0 + 4 * t, 4)}, {V(vG)}, {S(sK, 2)} offset:{512 * t}")
    t = vT
    e(f"""
    v_lshrrev_b32 {V(t)}, 6, v0
    v_mov_b32 {V(vBAD)}, 0
    v_readfirstlane_b32 {S(sW)}, {V(t)}
    v_bfe_u32 {V(t)}, v0, 3, 1
    v_mul_u32_u24 {V(vKR)}, 4352, {V(t)}
    v_bfe_u32 {V(t)}, v0, 5, 1
    v_mul_u32_u24 {V(t)}, 1088, {V(t)}
    v_add_u32 {V(vKR)}, {V(vKR)}, {V(t)}
    v_and_b32 {V(t)}, 3, v0
    v_mul_u32_u24 {V(t)}, 272, {V(t)}
    v_add_u32 {V(vKR)}, {V(vKR)}, {V(t)}
    v_bfe_u32 {V(t)}, v0, 2, 1
    v_lshl_add_u32 {V(vKR)}, {V(t)}, 7, {V(vKR)}
    v_bfe_u32 {V(t)}, v0, 4, 1
    v_lshl_add_u32 {V(vKR)}, {V(t)}, 6, {V(vKR)}
    s_mul_i32 {S(sT0)}, {S(sW)}, 4352
    s_mov_b32 m0, {S(sT0)}
    v_and_b32 {V(t)}, 63, v0
    v_lshlrev_b32 {V(vVR)}, 4, {V(t)}
    v_add_u32 {V(vVR)}, {VB}, {V(vVR)}
    v_and_b32 {V(t)}, 1, v0
    v_mul_u32_u24 {V(vVW)}, 8256, {V(t)}
    v_lshrrev_b32 {V(t)}, 5, v0
    v_lshl_add_u32 {V(vVW)}, {V(t)}, 8, {V(vVW)}
    v_bfe_u32 {V(t)}, v0, 1, 4
    v_lshl_add_u32 {V(vVW)}, {V(t)}, 4, {V(vVW)}
    v_add_u32 {V(vVW)}, {VB}, {V(vVW)}
    v_and_b32 {V(t)}, 31, v0
    v_lshlrev_b32 {V(vKC)}, 4, {V(t)}
    v_add_u32 {V(vKC)}, {TB - 2 * REC}, {V(vKC)}
    v_bfe_u32 {V(t)}, v0, 4, 2
    v_lshlrev_b32 {V(vCT)}, 5, {V(t)}
    v_add_u32 {V(vCT)}, {TB - 2 * REC + 1024}, {V(vCT)}
    v_and_b32 {V(t + 1)}, 15, v0
    v_min_u32 {V(t + 1)}, 3, {V(t + 1)}
    v_lshlrev_b32 {V(t + 1)}, 4, {V(t + 1)}
    v_lshl_add_u32 {V(vXB)}, {V(t)}, 6, {V(t + 1)}
    v_add_u32 {V(vXB)}, {TB - 2 * REC + 1280}, {V(vXB)}
    s_mov_b32 {S(sPK)}, 0x47800000
    s_mov_b32 {S(sC0)}, {hex((SIG << 7) * 0x10001)}
    s_mov_b32 {S(sC0 + 1)}, {hex(f2u(CSC * 2.0 ** (149 - SIG)))}
    s_mov_b32 {S(sC0 + 2)}, {hex(f2u(-CSC * 2.0 ** (-SIG)))}
    s_mov_b32 {S(sC0 + 3)}, 0xffff0000
    s_mov_b32 {S(sCNT)}, 15
    """)
    e(f"""
    v_lshrrev_b32 {V(t + 3)}, 4, v0
    v_mul_u32_u24 {V(t)}, {REC}, {V(t + 3)}
    v_and_b32 {V(t + 3)}, 15, v0
    v_lshl_add_u32 {V(t)}, {V(t + 3)}, 5, {V(t)}
    v_add_u32 {V(t)}, {TB}, {V(t)}
    v_lshrrev_b32 {V(t + 3)}, 3, v0
    v_mul_u32_u24 {V(t + 1)}, {REC}, {V(t + 3)}
    v_and_b32 {V(t + 3)}, 7, v0
    v_lshl_add_u32 {V(t + 2)}, {V(t + 3)}, 6, {V(t + 1)}
    v_lshl_add_u32 {V(t + 1)}, {V(t + 3)}, 5, {V(t + 1)}
    v_add_u32 {V(t + 1)}, {TB + 1024}, {V(t + 1)}
    v_add_u32 {V(t + 2)}, {TB + 1280}, {V(t + 2)}
    """)
    for r in range(144):
        e(f"v_accvgpr_write_b32 {A(r)}, 0")
    TA, TBv, TM = VP0, VP0 + 8, CI0
    chk = t + 4
    e(f"v_mov_b32 {V(chk)}, 0")

    def kcoef(s):
        e.slot()
        for k in range(4):
            e(f"v_lshlrev_b32 {V(TM)}, 16, {V(KSA + 4 * s + k)}")
            e(f"v_and_b32 {V(TM + 1)}, {S(sC0 + 3)}, {V(KSA + 4 * s + k)}")
            e(f"v_lshlrev_b32 {V(TM + 2)}, 16, {V(KZA + 4 * s + k)}")
            e(f"v_and_b32 {V(TM + 3)}, {S(sC0 + 3)}, {V(KZA + 4 * s + k)}")
            for h in range(2):
                e(f"v_mul_f32 {V(TA + 2 * k + h)}, {S(sC0 + 1)}, {V(TM + h)}")
                e(f"v_mul_f32 {V(TM + h)}, {S(sC0 + 2)}, {V(TM + h)}")
                e(f"v_mul_f32 {V(TBv + 2 * k + h)}, {V(TM + h)}, {V(TM + 2 + h)}")
                e(f"v_fma_f32 {V(chk)}, {V(TA + 2 * k + h)}, 0, {V(chk)}")
                e(f"v_fma_f32 {V(chk)}, {V(TBv + 2 * k + h)}, 0, {V(chk)}")
        for h in range(2):
            e.add(lds(I(f"ds_write_b128 {V(t)}, {V(TA + 4 * h, 4)} offset:{s * 16 * REC + 16 * h}")))
            e.add(lds(I(f"ds_write_b128 {V(t)}, {V(TBv + 4 * h, 4)} offset:{s * 16 * REC + 512 + 16 * h}")))
    kcoef(0)
    e.slot()
    F, CT, RI, HI, LO = 40, 48, VP0, VP0 + 8, VP0 + 12
    for k in range(4):
        e(f"v_lshlrev_b32 {V(F + 2 * k)}, 16, {V(VSA + k)}")
        e(f"v_and_b32 {V(F + 2 * k + 1)}, {S(sC0 + 3)}, {V(VSA + k)}")
    for k in range(8):
        e(f"v_log_f32 {V(CT + k)}, {V(F + k)}")
        e(f"v_rcp_f32 {V(RI + k)}, {V(F + k)}")
    mn, mx = CI0, CI0 + 1
    e(f"""
    v_min3_u32 {V(mn)}, {V(F)}, {V(F + 1)}, {V(F + 2)}
    v_max3_u32 {V(mx)}, {V(F)}, {V(F + 1)}, {V(F + 2)}
    v_min3_u32 {V(mn)}, {V(F + 3)}, {V(F + 4)}, {V(mn)}
    v_max3_u32 {V(mx)}, {V(F + 3)}, {V(F + 4)}, {V(mx)}
    v_min3_u32 {V(mn)}, {V(F + 5)}, {V(F + 6)}, {V(mn)}
    v_max3_u32 {V(mx)}, {V(F + 5)}, {V(F + 6)}, {V(mx)}
    v_min_u32 {V(mn)}, {V(F + 7)}, {V(mn)}
    v_max_u32 {V(mx)}, {V(F + 7)}, {V(mx)}
    v_cmp_gt_u32 vcc, {hex(f2u(2.0 ** -16))}, {V(mn)}
    v_cndmask_b32 {V(vBAD)}, {V(vBAD)}, 1, vcc
    v_cmp_lt_u32 vcc, {hex(f2u(2.0 ** 8))}, {V(mx)}
    v_cndmask_b32 {V(vBAD)}, {V(vBAD)}, 1, vcc
    """)
    for k in range(8):
        e(f"v_add_f32 {V(CT + k)}, {hex(f2u(float(POFF)))}, {V(CT + k)}")
    for k in range(4):
        e(f"v_cvt_pk_bf16_f32 {V(HI + k)}, {V(RI + 2 * k)}, {V(RI + 2 * k + 1)}")
    for k in range(4):
        e(f"v_lshlrev_b32 {V(F)}, 16, {V(HI + k)}")
        e(f"v_and_b32 {V(F + 1)}, {S(sC0 + 3)}, {V(HI + k)}")
        e(f"v_sub_f32 {V(F)}, {V(RI + 2 * k)}, {V(F)}")
        e(f"v_sub_f32 {V(F + 1)}, {V(RI + 2 * k + 1)}, {V(F + 1)}")
        e(f"v_cvt_pk_bf16_f32 {V(LO + k)}, {V(F)}, {V(F + 1)}")
    for k in range(4):
        e(f"v_mov_b32 {V(F + k)}, 0")
    e.add(lds(I(f"ds_write_b128 {V(t + 1)}, {V(CT, 4)}")))
    e.add(lds(I(f"ds_write_b128 {V(t + 1)}, {V(CT + 4, 4)} offset:16")))
    e.add(lds(I(f"ds_write_b128 {V(t + 2)}, {V(HI, 4)}")))
    e.add(lds(I(f"ds_write_b128 {V(t + 2)}, {V(LO, 4)} offset:16")))
    e.add(lds(I(f"ds_write_b128 {V(t + 2)}, {V(VZA, 4)} offset:32")))
    e.add(lds(I(f"ds_write_b128 {V(t + 2)}, {V(F, 4)} offset:48")))
    kcoef(1)
    e(f"""
    v_cmp_u_f32 vcc, {V(chk)}, {V(chk)}
    v_cndmask_b32 {V(vBAD)}, {V(vBAD)}, 1, vcc
    """)
    e.slot()
    e("s_barrier")
    e(f"ds_read_b128 {V(KC0, 4)}, {V(vKC)} offset:{2 * REC}")
    e(f"ds_read_b128 {V(KC0 + 4, 4)}, {V(vKC)} offset:{2 * REC + 512}")
    e(f"ds_read_b128 {V(CI0, 4)}, {V(vCT)} offset:{2 * REC}")
    for tk in range(8):
        e.slot()
        b = K0 + 4 * tk
        for p in range(2):
            e(f"v_pk_fma_f32 {V(b + 2 * p, 2)}, {V(b + 2 * p, 2)}, {V(KC0 + 2 * p, 2)}, {V(KC0 + 4 + 2 * p, 2)}")
        for p in range(2):
            e(f"v_cvt_pk_bf16_f32 {V(b + 2 * p)}, {V(b + 2 * p)}, {V(b + 2 * p + 1)}")
        for p in range(2):
            e.add(k_write(0, tk, p, b + 2 * p))
    e.slot()
    e("s_barrier")
    for ks in range(4):
        e.add(k_read(0, 0, ks, A(KF(0, ks), 4)))
    e(f"v_mov_b32 {V(vT + 6)}, 0")
    fix_q(e, S0, True)
    e(f"""
    v_and_b32 {V(vT + 6)}, 0x80008000, {V(vT + 6)}
    v_or_b32 {V(vBAD)}, {V(vBAD)}, {V(vT + 6)}
    """)
    if opt.stamp:
        e("s_memtime s[66:67]")
    e.slot()
    return e.c


def out_addr(e):
    e(f"""
    v_and_b32 {V(vT + 2)}, 63, v0
    v_lshlrev_b32 {V(vT + 2)}, 4, {V(vT + 2)}
    v_lshrrev_b32 {V(vT + 3)}, 6, v0
    v_lshl_add_u32 {V(vT + 2)}, {V(vT + 3)}, 14, {V(vT + 2)}
    v_add_u32 {V(vT)}, 0x1000, {V(vT + 2)}
    v_add_u32 {V(vT + 1)}, 0x3000, {V(vT + 2)}
    """)


def epilogue(opt):
    e = Lin()
    if opt.stamp:
        e("s_memtime s[68:69]")
    out_addr(e)
    mn, mx, chk = vT + 2, vT + 3, vT + 4
    X, L, CA, CB = 16, 20, 24, 28
    e(f"""
    v_mov_b32 {V(mn)}, -1
    v_mov_b32 {V(mx)}, 0
    v_mov_b32 {V(chk)}, 0
    s_movk_i32 {S(sC0)}, 133
    """)
    dpp = "row_mask:0xf bank_mask:0xf"
    for qb in range(4):
        for r in range(4):
            e(f"v_accvgpr_read_b32 {V(X + r)}, {A(X0 + 4 * qb + r)}")
        for r in range(4):
            e(f"v_mov_b32_dpp {V(L + r)}, {V(X + r)} row_newbcast:0 {dpp}")
        for r in range(4):
            e(f"v_add_f32_dpp {V(L + r)}, {V(X + r)}, {V(L + r)} row_newbcast:1 {dpp}")
        for r in range(4):
            e(f"v_mov_b32_dpp {V(CB + r)}, {V(X + r)} row_newbcast:2 {dpp}")
        for r in range(4):
            e(f"v_rcp_f32 {V(CA + r)}, {V(L + r)}")
        e(f"""
        v_min3_u32 {V(mn)}, {V(L)}, {V(L + 1)}, {V(mn)}
        v_max3_u32 {V(mx)}, {V(L)}, {V(L + 1)}, {V(mx)}
        v_min3_u32 {V(mn)}, {V(L + 2)}, {V(L + 3)}, {V(mn)}
        v_max3_u32 {V(mx)}, {V(L + 2)}, {V(L + 3)}, {V(mx)}
        """)
        for r in range(4):
            e(f"v_mul_f32 {V(CB + r)}, {V(CB + r)}, {V(CA + r)}")
        for r in range(4):
            e(f"v_ldexp_f32 {V(CA + r)}, {V(CA + r)}, {S(sC0)}")
        for r in range(4):
            e(f"v_fma_f32 {V(chk)}, {V(CB + r)}, 0, {V(chk)}")
        for r in range(4):
            T = S0 + 8 * ((qb * 4 + r) % 8)
            D = P0 + 4 * ((qb * 4 + r) % 8)
            for db in range(8):
                e(f"v_accvgpr_read_b32 {V(T + db)}, {A(Oreg(db, qb) + r)}")
            for db in range(8):
                e(f"v_fma_f32 {V(T + db)}, {V(T + db)}, {V(CA + r)}, -{V(CB + r)}")
            if qb == 0 and r == 0:
                for db in range(8):
                    e(f"v_fma_f32 {V(chk)}, {V(T + db)}, 0, {V(chk)}")
            for k in range(4):
                e(f"v_cvt_pk_bf16_f32 {V(D + k)}, {V(T + 2 * k)}, {V(T + 2 * k + 1)}")
            e(f"global_store_dwordx4 {V(vT + qb // 2)}, {V(D, 4)}, {S(sO, 2)} offset:{(qb % 2) * 4096 - 4096 + 1024 * r}")
    e(f"""
    v_cmp_gt_u32 vcc, {hex(f2u(2.0 ** (POFF - 10)))}, {V(mn)}
    v_cndmask_b32 {V(vBAD)}, {V(vBAD)}, 1, vcc
    v_cmp_lt_u32 vcc, {hex(f2u(2.0 ** (POFF + 40)))}, {V(mx)}
    v_cndmask_b32 {V(vBAD)}, {V(vBAD)}, 1, vcc
    v_cmp_u_f32 vcc, {V(chk)}, {V(chk)}
    v_cndmask_b32 {V(vBAD)}, {V(vBAD)}, 1, vcc
    """)
    if opt.force_slow:
        e(f"v_mov_b32 {V(vBAD)}, 1")
    e(f"""
    v_cmp_ne_u32 vcc, 0, {V(vBAD)}
    s_or_b32 {S(sT0)}, vcc_lo, vcc_hi
    s_lshl_b32 {S(sT1)}, {S(sW)}, 2
    s_add_u32 {S(sT1)}, {S(sT1)}, {FLAG}
    v_mov_b32 {V(X)}, {S(sT0)}
    v_mov_b32 {V(X + 1)}, {S(sT1)}
    v_mov_b32 {V(X + 2)}, {FLAG}
    """)
    e.c[-6].rd = ['vcc']
    e.add(lds(I(f"ds_write_b32 {V(X + 1)}, {V(X)}")))
    e.slot()
    e("s_barrier")
    e(f"ds_read_b128 {V(L, 4)}, {V(X + 2)}")
    e.slot()
    e(f"""
    v_or_b32 {V(L)}, {V(L)}, {V(L + 1)}
    v_or3_b32 {V(L)}, {V(L)}, {V(L + 2)}, {V(L + 3)}
    v_readfirstlane_b32 {S(sT0)}, {V(L)}
    """)
    if opt.stamp:
        e(f"""
        s_waitcnt vmcnt(0)
        s_memtime s[70:71]
        s_memrealtime s[72:73]
        s_waitcnt lgkmcnt(0)
        s_sub_u32 s66, s66, s64
        s_sub_u32 s68, s68, s64
        s_sub_u32 s70, s70, s64
        v_mov_b32 v16, s66
        v_mov_b32 v17, s68
        v_mov_b32 v18, s70
        v_mov_b32 v19, s62
        v_mov_b32 v20, s72
        v_mov_b32 v21, 0
        v_mov_b32 v22, 0
        v_mov_b32 v23, 0
        s_lshl_b32 s74, s2, 2
        s_add_u32 s74, s74, {S(sW)}
        s_lshl_b32 s74, s74, 5
        v_mov_b32 v24, s74
        global_store_dwordx4 v24, v[16:19], s[60:61]
        global_store_dwordx4 v24, v[20:23], s[60:61] offset:16
        """)
    e(f"""
    s_cmp_eq_u32 {S(sT0)}, 0
    s_cbranch_scc1 L_end
    """)
    return e.c


def careful(opt):
    blocks = []
    sPASS, sTILE, sC, sM = 34, 35, 36, 37
    sKt, sVt = 38, 40
    M0 = 44
    ONES = XB0
    aKC, aVC = 48, 49
    e = Lin()
    e("L_careful:")
    e("s_waitcnt vmcnt(0) lgkmcnt(0)")
    q_addr(e)
    load_q(e, S0)
    e(f"""
    s_mov_b32 {S(sPASS)}, 0
    s_mov_b32 {S(sC)}, {hex(f2u(CSC))}
    s_mov_b32 {S(sM)}, 0xffff0000
    s_waitcnt vmcnt(0)
    """)
    fix_q(e, S0, False)
    for r in range(144):
        e(f"v_accvgpr_write_b32 {A(r)}, 0")
    for k in range(4):
        e(f"v_mov_b32 {V(M0 + k)}, 0xff800000")
        e(f"v_mov_b32 {V(ONES + k)}, 0x3f803f80")
    e("s_nop 7")
    blocks.append(e.c)

    e = Lin()
    e("L_c_pass:")
    e(f"""
    s_mov_b32 {S(sTILE)}, 0
    s_mov_b64 {S(sKt, 2)}, {S(sK0, 2)}
    s_mov_b64 {S(sVt, 2)}, {S(sV0, 2)}
    v_and_b32 {V(aKC)}, 31, v0
    v_lshlrev_b32 {V(aKC)}, 3, {V(aKC)}
    v_lshrrev_b32 {V(aVC)}, 5, v0
    v_lshlrev_b32 {V(aVC)}, 4, {V(aVC)}
    """)
    blocks.append(e.c)

    def rnd(e, a, b):
        e(f"v_cvt_pk_bf16_f32 {V(b)}, {V(a)}, {V(b)}")
        e(f"v_lshlrev_b32 {V(a)}, 16, {V(b)}")
        e(f"v_and_b32 {V(b)}, {S(sM)}, {V(b)}")

    e = Lin()
    e("L_c_tile:")
    KSr, KZr, VSr, VZr = 16, 18, 20, 24
    U = 28
    for t in range(8):
        e(f"global_load_dwordx4 {V(KS0 + 4 * t, 4)}, {V(vG)}, {S(sKt, 2)} offset:{512 * t}")
        e(f"global_load_dwordx4 {V(VS0 + 4 * t, 4)}, {V(vG)}, {S(sVt, 2)} offset:{512 * t}")
    e(f"""
    global_load_dwordx2 {V(KSr, 2)}, {V(aKC)}, {S(sKS, 2)}
    global_load_dwordx2 {V(KZr, 2)}, {V(aKC)}, {S(sKZ, 2)}
    global_load_dwordx4 {V(VSr, 4)}, {V(aVC)}, {S(sVS, 2)}
    global_load_dwordx4 {V(VZr, 4)}, {V(aVC)}, {S(sVZ, 2)}
    s_add_u32 {S(sKt)}, {S(sKt)}, 0x8000
    s_addc_u32 {S(sKt + 1)}, {S(sKt + 1)}, 0
    s_add_u32 {S(sVt)}, {S(sVt)}, 0x8000
    s_addc_u32 {S(sVt + 1)}, {S(sVt + 1)}, 0
    v_add_u32 {V(aKC)}, 256, {V(aKC)}
    v_add_u32 {V(aVC)}, 128, {V(aVC)}
    s_waitcnt vmcnt(0)
    """)
    for k in range(2):
        e(f"v_lshlrev_b32 {V(U + 2 * k)}, 16, {V(KSr + k)}")
        e(f"v_and_b32 {V(U + 2 * k + 1)}, {S(sM)}, {V(KSr + k)}")
        e(f"v_lshlrev_b32 {V(U + 4 + 2 * k)}, 16, {V(KZr + k)}")
        e(f"v_and_b32 {V(U + 4 + 2 * k + 1)}, {S(sM)}, {V(KZr + k)}")
    for t in range(8):
        for p in range(2):
            a = KS0 + 4 * t + 2 * p
            e(f"v_cvt_f32_i32 {V(a)}, {V(a)}")
            e(f"v_cvt_f32_i32 {V(a + 1)}, {V(a + 1)}")
            rnd(e, a, a + 1)
            e(f"v_sub_f32 {V(a)}, {V(a)}, {V(U + 4 + 2 * p)}")
            e(f"v_sub_f32 {V(a + 1)}, {V(a + 1)}, {V(U + 4 + 2 * p + 1)}")
            rnd(e, a, a + 1)
            e(f"v_mul_f32 {V(a)}, {V(a)}, {V(U + 2 * p)}")
            e(f"v_mul_f32 {V(a + 1)}, {V(a + 1)}, {V(U + 2 * p + 1)}")
            e(f"v_cvt_pk_bf16_f32 {V(a)}, {V(a)}, {V(a + 1)}")
    for k in range(4):
        e(f"v_lshlrev_b32 {V(U + 2 * k)}, 16, {V(VSr + k)}")
        e(f"v_and_b32 {V(U + 2 * k + 1)}, {S(sM)}, {V(VSr + k)}")
        e(f"v_lshlrev_b32 {V(U + 8 + 2 * k)}, 16, {V(VZr + k)}")
        e(f"v_and_b32 {V(U + 8 + 2 * k + 1)}, {S(sM)}, {V(VZr + k)}")
    for p in range(4):
        for j in range(4):
            a, b = VS0 + 8 * p + j, VS0 + 8 * p + 4 + j
            e(f"v_cvt_f32_i32 {V(a)}, {V(a)}")
            e(f"v_cvt_f32_i32 {V(b)}, {V(b)}")
            rnd(e, a, b)
            e(f"v_sub_f32 {V(a)}, {V(a)}, {V(U + 8 + 2 * p)}")
            e(f"v_sub_f32 {V(b)}, {V(b)}, {V(U + 8 + 2 * p + 1)}")
            rnd(e, a, b)
            e(f"v_mul_f32 {V(a)}, {V(a)}, {V(U + 2 * p)}")
            e(f"v_mul_f32 {V(b)}, {V(b)}, {V(U + 2 * p + 1)}")
            e(f"v_cvt_pk_bf16_f32 {V(VP0 + 4 * j + p)}, {V(a)}, {V(b)}")
    e("s_waitcnt lgkmcnt(0)\ns_barrier")
    for t in range(8):
        for p in range(2):
            e.add(k_write(0, t, p, KS0 + 4 * t + 2 * p))
    for j in range(4):
        e.add(v_write(0, j, VP0 + 4 * j))
    e("s_waitcnt lgkmcnt(0)\ns_barrier")
    for tb in range(4):
        for ks in range(4):
            e.add(k_read(0, tb, ks, A(KF(0, ks), 4)))
        e("s_waitcnt lgkmcnt(0)")
        for qb in range(4):
            for ks in range(4):
                c = "0" if ks == 0 else V(Sreg(tb, qb), 4)
                e(f"{MF} {V(Sreg(tb, qb), 4)}, {A(KF(0, ks), 4)}, {A(Qreg(qb, ks), 4)}, {c}")
        e("s_nop 7")
    e(f"""
    s_nop 7
    s_cmp_lg_u32 {S(sPASS)}, 0
    s_cbranch_scc1 L_c_acc
    """)
    for tb in range(4):
        for qb in range(4):
            s = Sreg(tb, qb)
            e(f"v_max3_f32 {V(M0 + qb)}, {V(s)}, {V(s + 1)}, {V(M0 + qb)}")
            e(f"v_max3_f32 {V(M0 + qb)}, {V(s + 2)}, {V(s + 3)}, {V(M0 + qb)}")
    e("s_branch L_c_next")
    blocks.append(e.c)

    e = Lin()
    e("L_c_acc:")
    for tb in range(4):
        for qb in range(4):
            s = Sreg(tb, qb)
            for r in range(4):
                e(f"v_sub_f32 {V(s + r)}, {V(s + r)}, {V(M0 + qb)}")
            for r in range(4):
                e(f"v_mul_f32 {V(s + r)}, {S(sC)}, {V(s + r)}")
            for r in range(4):
                e(f"v_exp_f32 {V(s + r)}, {V(s + r)}")
            for h in range(2):
                e(f"v_cvt_pk_bf16_f32 {V(Preg(qb, tb // 2) + 2 * (tb % 2) + h)}, {V(s + 2 * h)}, {V(s + 2 * h + 1)}")
    for blk in range(9):
        if blk < 8:
            for kk in range(2):
                e.add(v_read(0, blk, kk, A(VF(0, kk), 4)))
            e("s_waitcnt lgkmcnt(0)")
        for qb in range(4):
            for kk in range(2):
                d = A(Oreg(blk, qb), 4) if blk < 8 else A(X0 + 4 * qb, 4)
                b = A(VF(0, kk), 4) if blk < 8 else V(ONES, 4)
                e(f"{MF} {d}, {V(Preg(qb, kk), 4)}, {b}, {d}")
        e("s_nop 7")
    blocks.append(e.c)

    e = Lin()
    e("L_c_next:")
    e(f"""
    s_nop 7
    s_add_u32 {S(sTILE)}, {S(sTILE)}, 1
    s_cmp_lt_u32 {S(sTILE)}, 32
    s_cbranch_scc1 L_c_tile
    s_cmp_lg_u32 {S(sPASS)}, 0
    s_cbranch_scc1 L_c_out
    """)
    for qb in range(4):
        for sw in ("v_permlane32_swap_b32", "v_permlane16_swap_b32"):
            e(f"v_mov_b32 {V(16)}, {V(M0 + qb)}")
            e(f"{sw} {V(M0 + qb)}, {V(16)}")
            e(f"v_max_f32 {V(M0 + qb)}, {V(M0 + qb)}, {V(16)}")
    e(f"""
    s_mov_b32 {S(sPASS)}, 1
    s_branch L_c_pass
    """)
    blocks.append(e.c)

    e = Lin()
    e("L_c_out:")
    out_addr(e)
    CA = 24
    for qb in range(4):
        for r in range(4):
            e(f"v_accvgpr_read_b32 {V(CA + r)}, {A(X0 + 4 * qb + r)}")
        for r in range(4):
            e(f"v_rcp_f32 {V(CA + r)}, {V(CA + r)}")
        for r in range(4):
            T = S0 + 8 * ((qb * 4 + r) % 8)
            D = P0 + 4 * ((qb * 4 + r) % 8)
            for db in range(8):
                e(f"v_accvgpr_read_b32 {V(T + db)}, {A(Oreg(db, qb) + r)}")
            for db in range(8):
                e(f"v_mul_f32 {V(T + db)}, {V(T + db)}, {V(CA + r)}")
            for k in range(4):
                e(f"v_cvt_pk_bf16_f32 {V(D + k)}, {V(T + 2 * k)}, {V(T + 2 * k + 1)}")
            e(f"global_store_dwordx4 {V(vT + qb // 2)}, {V(D, 4)}, {S(sO, 2)} offset:{(qb % 2) * 4096 - 4096 + 1024 * r}")
    blocks.append(e.c)
    out = []
    for b in blocks:
        b = [x for x in b if x.kind != 'slot']
        fix_hazards_linear(b)
        place_waits(b, fix=False)
        out += b
    return out


def build(opt):
    tab = TabState(-2)
    pro = prologue(opt)
    itm1 = Iter(-1, tab, opt)
    base0 = dict(tab.base)
    it0 = Iter(0, tab, opt, loop=True)
    it1 = Iter(1, tab, opt, loop=True)
    assert all(tab.base[r] == base0[r] + 2 for r in base0)
    tab.base = {r: v + 28 for r, v in tab.base.items()}
    it30 = Iter(30, tab, opt)
    it31 = Iter(31, tab, opt)
    epi = epilogue(opt)
    head, tail = I("L_loop:"), I("s_cbranch_scc1 L_loop")
    align = I(".p2align 3")

    def assemble():
        front = pro + itm1.code()
        body = it0.code() + it1.code()
        back = it30.code() + it31.code() + epi
        return front, body, back

    def trace(front, body, back, trips=3):
        return front + (body + [tail]) * trips + back
    front, body, back = assemble()
    for _ in range(6):
        if place_waits(trace(front, body, back)) == 0:
            break
    for it in (itm1, it0, it1, it30, it31):
        it.place_salu()
    front, body, back = assemble()
    fix_hazards_linear(front)
    fix_hazards_linear(back)
    for trips in (1, 2, 3):
        tr = trace(front, body, back, trips)
        place_waits(tr, fix=False)
        bad = check_hazards(tr)
        for b in bad:
            print("HAZARD", b, file=sys.stderr)
        assert not bad
    print("issue-cycle estimate: front", issue_cycles(front), "body/2", issue_cycles(body + body) / 4, "back", issue_cycles(back), file=sys.stderr)
    code = front + [align, head] + body + [tail] + back + careful(opt) + [I("L_end:")]
    return code


HEADER = open(__file__.rsplit('/', 1)[0] + '/header.txt').read() if '/' in __file__ else open('header.txt').read()


def main():
    ap = argparse.ArgumentParser()
    ap.add_argument('-o', default='cdna_kernels/' + NAME + '.s')
    ap.add_argument('--stamp', action='store_true')
    ap.add_argument('--force-slow', action='store_true')
    opt = ap.parse_args()
    code = build(opt)
    s = HEADER.replace('@LDS@', str(LDS_BYTES))
    s += f""".amdgcn_target "amdgcn-amd-amdhsa--gfx950"
.text
.globl {NAME}_kernel
.p2align 8
.type {NAME}_kernel,@function
{NAME}_kernel:
"""
    s += render(code)
    s += f"""    s_endpgm
.section .rodata,"a"
.p2align 6
.amdhsa_kernel {NAME}_kernel
  .amdhsa_next_free_vgpr 512
  .amdhsa_next_free_sgpr 102
  .amdhsa_accum_offset 256
  .amdhsa_group_segment_fixed_size 0
  .amdhsa_kernarg_size 80
  .amdhsa_user_sgpr_count 2
  .amdhsa_user_sgpr_kernarg_segment_ptr 1
  .amdhsa_system_sgpr_workgroup_id_x 1
  .amdhsa_float_denorm_mode_32 3
.end_amdhsa_kernel
"""
    open(opt.o, 'w').write(s)


if __name__ == '__main__':
    main()
```

```python
import sys, struct, math, argparse
from asmlib import *

NAME = "standalone__kv_cache_quant_int4_int2_kv_with_per_channel_or_per_token_scales__prompt"


def f2u(x):
    return struct.unpack('<I', struct.pack('<f', x))[0]


KSZ = 17408
VB = 2 * KSZ
VSZ = 16512
TB = VB + 2 * VSZ
REC = 1792
FLAG = TB + 32 * REC
LDS_BYTES = FLAG + 64
vG, vKR, vVR, vVW, vKC, vCT, vXB = 1, 2, 3, 4, 5, 6, 7
vBAD = 8
vT = 10
XB0 = 56
S0, P0, KS0, VS0, VP0, CI0, KC0 = 64, 128, 160, 192, 224, 240, 248
O0, X0, Q0, KF0, VF0 = 0, 128, 144, 208, 240
sQ, sK, sV, sKS, sKZ, sVS, sVZ, sO = 4, 6, 8, 10, 12, 14, 16, 18
sH, sQB, sW, sCNT, sPK, sINC, sT0, sT1 = 20, 21, 22, 23, 24, 25, 26, 27
sK0, sV0 = 28, 30
sC0 = 32

CSC = math.log2(math.e) / math.sqrt(128.0)
SIG = 32
POFF = 64


def Sreg(tb, qb): return S0 + (tb * 4 + qb) * 4
def Preg(qb, kk): return P0 + (qb * 2 + kk) * 4
def Oreg(db, qb): return O0 + (db * 4 + qb) * 4
def Qreg(qb, ks): return Q0 + (qb * 4 + ks) * 4
def KF(buf, ks): return KF0 + (buf * 4 + ks) * 4
def VF(buf, kk): return VF0 + (buf * 2 + kk) * 4


MF = "v_mfma_f32_16x16x32_bf16"


def lds(ins):
    ins.pre_barrier = True
    return ins


def k_read(buf, tb, ks, dst):
    off = buf * KSZ + (tb // 2) * 8704 + (tb % 2) * 2176 + 16 * ks
    return lds(I(f"ds_read_b128 {dst}, {V(vKR)} offset:{off}"))


def v_read(buf, db, kk, dst):
    off = buf * VSZ + (db * 2 + kk) * 1024 + (db // 4) * 64
    return lds(I(f"ds_read_b128 {dst}, {V(vVR)} offset:{off}"))


def k_write(buf, e, p, src):
    off = buf * KSZ + ((e // 4) * 2 + p) * 1088 + (e % 4) * 272
    return lds(I(f"ds_write_addtid_b32 {V(src)} offset:{off}"))


def v_write(buf, j, src):
    return lds(I(f"ds_write_b128 {V(vVW)}, {V(src, 4)} offset:{buf * VSZ + j * 2048}"))


def gap_pattern(opt):
    g = [[] for _ in range(136)]
    memA = (['Kf'] * 4 + ['Ci'] + ['gV'] * 3) * 2 + ['Kf'] * 4 + ['Ci'] + ['gV'] * 2 + ['Kc'] + ['Vf'] * 4 + ['Kc', 'Ad']
    mi = 0
    for c in range(16):
        n = 4 * c
        other = ['Vp', 'Vp'] if c < 4 else ['E']
        if c < 15:
            g[n + 0] = [memA[mi], 'C']
            g[n + 1] = list(other)
            g[n + 2] = [memA[mi + 1], 'C']
            g[n + 3] = list(other)
            mi += 2
        else:
            for k in range(4):
                g[n + k] = ['E']
    B = [None] * 72
    B[0] = ['Xb', 'Xb']
    for b in range(1, 7):
        B[8 * b] = ['Vf', 'Vf']
    grp = [['W', 'Kp', 'Kp', 'Kp', 'Kp'], ['Kv', 'Kv'], ['a', 'Kv'], ['a', 'Kv'], ['gK', 'a'], ['a', 'gK']]
    for t, start in enumerate((1, 13, 25, 37)):
        m = start
        for k, x in enumerate(grp):
            while B[m] is not None:
                m += 1
            if k == 0:
                assert m % 2 == 1
            B[m] = list(x)
            m += 2 if k != 0 else 1
    B[56] = ['BAR', 'Kf', 'Kf']
    B[57] = ['Kf', 'Kf']
    B[58] = ['Ci', 'Ad']
    B[66] = ['C', 'C']
    for m in range(72):
        if B[m] is None:
            B[m] = ['E']
    ne = sum(x.count('E') for x in g) + sum(x.count('E') for x in B)
    m = 71
    while ne < 64:
        B[m].append('E')
        ne += 1
        m -= 2
    assert ne == 64
    B[69].append('Ad')
    for m in range(72):
        g[64 + m] = B[m]
    return g


class TabState:
    def __init__(self, base):
        self.base = {vKC: base, vCT: base, vXB: base}


def iteration(i, tab, opt, loop=False):
    doQK = i + 1 <= 31
    doPV = i >= 0
    doK = i + 2 <= 31
    doV = i + 1 <= 31
    ldK = i + 3 <= 31 or loop
    ldV = i + 2 <= 31
    kb = (i + 1) % 2
    vb = i % 2
    st = {}
    st['E'] = [I(f"v_exp_f32 {V(S0 + r)}, {V(S0 + r)}") if doQK else None for r in range(64)]

    def cvt(c, h):
        tb, qb = c // 4, c % 4
        return I(f"v_cvt_pk_bf16_f32 {V(Preg(qb, tb // 2) + 2 * (tb % 2) + h)}, {V(Sreg(tb, qb) + 2 * h)}, {V(Sreg(tb, qb) + 2 * h + 1)}")
    st['C'] = [cvt(c, h) if doPV else None for c in range(1, 16) for h in range(2)] + [cvt(0, h) if doQK else None for h in range(2)]
    st['Kf'] = [k_read(kb, tb, ks, A(KF(tb % 2, ks), 4)) if doQK else None for tb in (1, 2, 3) for ks in range(4)] + \
               [k_read(i % 2, 0, ks, A(KF(0, ks), 4)) if doK else None for ks in range(4)]
    st['Vf'] = [v_read(vb, db, kk, A(VF(db % 2, kk), 4)) if doPV else None for db in range(8) for kk in range(2)]
    st['Ci'] = [(vCT, i + 1, (tb // 2) * 128 + (tb % 2) * 16, CI0 + 4 * (tb % 2)) if doQK else None for tb in (1, 2, 3)] + \
               [(vCT, i + 2, 0, CI0) if doK else None]
    st['Kc'] = [(vKC, i + 2, 512 * h, KC0 + 4 * h) if doK else None for h in range(2)]
    st['Xb'] = [(vXB, i, 256 * kk, XB0 + 4 * kk) if doPV else None for kk in range(2)]
    st['Vp'] = [I(f"v_fma_f32 {V(VP0 + 4 * j + p)}, {V(VS0 + 4 * (2 * p + 1) + j)}, {S(sPK)}, {V(VS0 + 4 * (2 * p) + j)}") if doV else None
                for p in range(4) for j in range(4)]
    st['W'] = [v_write((i + 1) % 2, j, VP0 + 4 * j) if doV else None for j in range(4)]
    st['gV'] = [I(f"global_load_dwordx4 {V(VS0 + 4 * e, 4)}, {V(vG)}, {S(sV, 2)} offset:{512 * e}{opt.kvmod}") if ldV else None for e in range(8)]
    st['gK'] = [I(f"global_load_dwordx4 {V(KS0 + 4 * e, 4)}, {V(vG)}, {S(sK, 2)} offset:{512 * e}{opt.kvmod}") if ldK else None for e in range(8)]
    st['Kp'] = [I(f"v_pk_fma_f32 {V(KS0 + 4 * e + 2 * p, 2)}, {V(KS0 + 4 * e + 2 * p, 2)}, {V(KC0 + 2 * p, 2)}, {V(KC0 + 4 + 2 * p, 2)}") if doK else None
                for e in range(8) for p in range(2)]
    st['Kv'] = [I(f"v_cvt_pk_bf16_f32 {V(KS0 + 4 * e + 2 * p)}, {V(KS0 + 4 * e + 2 * p)}, {V(KS0 + 4 * e + 2 * p + 1)}") if doK else None
                for e in range(8) for p in range(2)]
    st['a'] = [k_write(i % 2, e, p, KS0 + 4 * e + 2 * p) if doK else None for e in range(8) for p in range(2)]
    st['BAR'] = [I("s_barrier") if (doK or doV) else None]
    adv = (i % 2 == 1) and i < 30
    st['Ad'] = [r if adv else None for r in (vKC, vXB, vCT)]
    mf = []
    for n in range(64):
        tb, qb, ks = n // 16, (n // 4) % 4, n % 4
        c = V(CI0 + 4 * (tb % 2), 4) if ks == 0 else V(Sreg(tb, qb), 4)
        mf.append(I(f"{MF} {V(Sreg(tb, qb), 4)}, {A(KF(tb % 2, ks), 4)}, {A(Qreg(qb, ks), 4)}, {c}") if doQK else None)
    for m in range(72):
        blk, qb, kk = m // 8, (m // 2) % 4, m % 2
        d = A(Oreg(blk, qb), 4) if blk < 8 else A(X0 + 4 * qb, 4)
        b = A(VF(blk % 2, kk), 4) if blk < 8 else V(XB0 + 4 * kk, 4)
        mf.append(I(f"{MF} {d}, {V(Preg(qb, kk), 4)}, {b}, {d}") if doPV else None)
    salu = []
    if ldV:
        salu.append((48, 130, [f"s_add_u32 {S(sV)}, {S(sV)}, 0x8000", f"s_addc_u32 {S(sV + 1)}, {S(sV + 1)}, 0"]))
    if ldK:
        if loop and i % 2 == 1:
            salu.append((2, 60, [f"s_cmp_eq_u32 {S(sCNT)}, 1", f"s_cselect_b32 {S(sINC)}, 0, 0x8000",
                                 f"s_add_u32 {S(sK)}, {S(sK)}, {S(sINC)}", f"s_addc_u32 {S(sK + 1)}, {S(sK + 1)}, 0"]))
        else:
            salu.append((2, 60, [f"s_add_u32 {S(sK)}, {S(sK)}, 0x8000", f"s_addc_u32 {S(sK + 1)}, {S(sK + 1)}, 0"]))
    if loop and i % 2 == 1:
        salu.append((124, 134, [f"s_sub_u32 {S(sCNT)}, {S(sCNT)}, 1", f"s_cmp_lg_u32 {S(sCNT)}, 0"]))
    pat = gap_pattern(opt)
    pos = {k: 0 for k in st}
    gaps = []
    for n in range(136):
        g = []
        for k in pat[n]:
            x = st[k][pos[k]]
            pos[k] += 1
            if x is None:
                continue
            if k in ('Ci', 'Kc', 'Xb'):
                reg, tile, off, dst = x
                x = I(f"ds_read_b128 {V(dst, 4)}, {V(reg)} offset:{(tile - tab.base[reg]) * REC + off}")
            elif k == 'Ad':
                tab.base[x] += 2
                x = I(f"v_add_u32 {V(x)}, {2 * REC}, {V(x)}")
            g.append(x)
        gaps.append(g)
    for k in st:
        assert pos[k] == len(st[k]), (k, pos[k], len(st[k]))
    return mf, gaps, salu


class Iter:
    def __init__(self, i, tab, opt, loop=False):
        self.mf, self.gaps, self.salu = iteration(i, tab, opt, loop)
        self.slots = [Slot() for _ in range(136)]
        self.extra = [[] for _ in range(136)]
        self.loop = loop

    def code(self):
        out = []
        for n in range(136):
            if self.mf[n] is not None:
                out.append(self.mf[n])
            g = self.gaps[n]
            if g and g[0].kind == 'barrier':
                out += g
            else:
                out.append(self.slots[n])
                out += self.extra[n]
                out += g
        return out

    def place_salu(self):
        busy = [self.slots[n].active() or (self.gaps[n] and self.gaps[n][0].kind == 'barrier') for n in range(136)]
        lo_all = 0
        for lo, hi, lst in sorted(self.salu):
            n = max(lo, lo_all)
            for t in lst:
                while busy[n]:
                    n += 1
                assert n <= hi, (lo, hi, lst)
                self.extra[n].append(I(t))
                busy[n] = True
            lo_all = n


class Lin:
    def __init__(self):
        self.c = []

    def __call__(self, t):
        for line in t.strip().split('\n'):
            line = line.strip()
            if line:
                self.c.append(I(line))
        return self.c[-1]

    def slot(self):
        self.c.append(Slot())

    def add(self, ins):
        self.c.append(ins)


def stamp(e, opt, k):
    if opt.stamp:
        e(f"""
        s_memtime s[76:77]
        s_waitcnt lgkmcnt(0)
        s_sub_u32 s76, s76, s64
        v_writelane_b32 v9, s76, {k}
        """)


def load_q(e, base, mod=""):
    for qb in range(4):
        for ks in range(4):
            e(f"global_load_dwordx4 {V(base + (qb * 4 + ks) * 4, 4)}, {V(vT + qb // 2)}, {S(sQ, 2)} offset:{(qb % 2) * 4096 - 4096 + 32 * ks}{mod}")


def q_addr(e):
    t = vT + 2
    e(f"""
    v_and_b32 {V(t)}, 3, v0
    v_lshlrev_b32 {V(t)}, 10, {V(t)}
    v_bfe_u32 {V(t + 1)}, v0, 2, 2
    v_lshl_add_u32 {V(t)}, {V(t + 1)}, 8, {V(t)}
    v_bfe_u32 {V(t + 1)}, v0, 4, 1
    v_lshl_add_u32 {V(t)}, {V(t + 1)}, 7, {V(t)}
    v_bfe_u32 {V(t + 1)}, v0, 5, 1
    v_lshl_add_u32 {V(t)}, {V(t + 1)}, 4, {V(t)}
    v_lshrrev_b32 {V(t + 1)}, 6, v0
    v_lshl_add_u32 {V(t)}, {V(t + 1)}, 14, {V(t)}
    v_add_u32 {V(vT)}, 0x1000, {V(t)}
    v_add_u32 {V(vT + 1)}, 0x3000, {V(t)}
    """)


def fix_q(e, base, scale):
    for f in range(16):
        b = base + 4 * f
        e.slot()
        if scale:
            for k in range(4):
                e(f"v_add_u32 {V(vT + 2 + k)}, {S(sC0)}, {V(b + k)}")
            for k in range(4):
                e(f"v_bitop3_b32 {V(vT + 6)}, {V(vT + 2 + k)}, {V(b + k)}, {V(vT + 6)} bitop3:0xbe")
            r = vT + 2
        else:
            r = b
        e(f"v_permlane32_swap_b32 {V(r)}, {V(r + 1)}")
        e(f"v_permlane32_swap_b32 {V(r + 2)}, {V(r + 3)}")
        for k, src in enumerate((0, 2, 1, 3)):
            e(f"v_accvgpr_write_b32 {A(Q0 + 4 * f + k)}, {V(r + src)}")


def prologue(opt):
    e = Lin()
    e(f"""
    s_cmp_ge_u32 s2, 256
    s_cbranch_scc1 L_end
    s_load_dwordx16 s[4:19], s[0:1], 0
    """)
    if opt.stamp:
        e("s_load_dwordx2 s[60:61], s[0:1], 72\ns_memrealtime s[62:63]\ns_memtime s[64:65]")
    e(f"""
    s_and_b32 {S(sH)}, s2, 7
    s_lshl_b32 {S(sH)}, {S(sH)}, 2
    s_lshr_b32 {S(sT0)}, s2, 6
    s_add_u32 {S(sH)}, {S(sH)}, {S(sT0)}
    s_bfe_u32 {S(sQB)}, s2, 0x30003
    v_lshrrev_b32 {V(vT)}, 5, v0
    v_and_b32 {V(vT + 1)}, 31, v0
    v_lshlrev_b32 {V(vG)}, 12, {V(vT)}
    v_lshl_add_u32 {V(vG)}, {V(vT + 1)}, 4, {V(vG)}
    v_lshlrev_b32 {V(vT + 2)}, 4, v0
    s_lshl_b32 {S(sT0)}, {S(sH)}, 13
    s_lshl_b32 {S(sT1)}, {S(sH)}, 12
    """)
    e.slot()
    e(f"""
    s_add_u32 {S(sKS)}, {S(sKS)}, {S(sT0)}
    s_addc_u32 {S(sKS + 1)}, {S(sKS + 1)}, 0
    s_add_u32 {S(sKZ)}, {S(sKZ)}, {S(sT0)}
    s_addc_u32 {S(sKZ + 1)}, {S(sKZ + 1)}, 0
    s_add_u32 {S(sVS)}, {S(sVS)}, {S(sT1)}
    s_addc_u32 {S(sVS + 1)}, {S(sVS + 1)}, 0
    s_add_u32 {S(sVZ)}, {S(sVZ)}, {S(sT1)}
    s_addc_u32 {S(sVZ + 1)}, {S(sVZ + 1)}, 0
    v_add_u32 {V(vT + 3)}, 0x1000, {V(vT + 2)}
    """)
    KSA, KZA, VSA, VZA = 16, 24, 32, 36
    e(f"""
    global_load_dwordx4 {V(KSA, 4)}, {V(vT + 2)}, {S(sKS, 2)}
    global_load_dwordx4 {V(KZA, 4)}, {V(vT + 2)}, {S(sKZ, 2)}
    global_load_dwordx4 {V(VSA, 4)}, {V(vT + 2)}, {S(sVS, 2)}
    global_load_dwordx4 {V(VZA, 4)}, {V(vT + 2)}, {S(sVZ, 2)}
    global_load_dwordx4 {V(KSA + 4, 4)}, {V(vT + 3)}, {S(sKS, 2)}
    global_load_dwordx4 {V(KZA + 4, 4)}, {V(vT + 3)}, {S(sKZ, 2)}
    s_lshl_b32 {S(sT0)}, {S(sH)}, 20
    s_add_u32 {S(sK)}, {S(sK)}, {S(sT0)}
    s_addc_u32 {S(sK + 1)}, {S(sK + 1)}, 0
    s_add_u32 {S(sV)}, {S(sV)}, {S(sT0)}
    s_addc_u32 {S(sV + 1)}, {S(sV + 1)}, 0
    """)
    K0 = P0
    for t in range(8):
        e(f"global_load_dwordx4 {V(K0 + 4 * t, 4)}, {V(vG)}, {S(sK, 2)} offset:{512 * t}{opt.kvmod}")
    e(f"""
    s_lshl_b32 {S(sT0)}, {S(sH)}, 3
    s_add_u32 {S(sT0)}, {S(sT0)}, {S(sQB)}
    s_lshl_b32 {S(sT0)}, {S(sT0)}, 16
    s_add_u32 {S(sQ)}, {S(sQ)}, {S(sT0)}
    s_addc_u32 {S(sQ + 1)}, {S(sQ + 1)}, 0
    s_add_u32 {S(sO)}, {S(sO)}, {S(sT0)}
    s_addc_u32 {S(sO + 1)}, {S(sO + 1)}, 0
    s_mov_b64 {S(sK0, 2)}, {S(sK, 2)}
    s_mov_b64 {S(sV0, 2)}, {S(sV, 2)}
    """)
    q_addr(e)
    load_q(e, S0, opt.qmod)
    for t in range(8):
        e(f"global_load_dwordx4 {V(VS0 + 4 * t, 4)}, {V(vG)}, {S(sV, 2)} offset:{512 * t}{opt.kvmod}")
    e(f"""
    s_add_u32 {S(sK)}, {S(sK)}, 0x8000
    s_addc_u32 {S(sK + 1)}, {S(sK + 1)}, 0
    s_add_u32 {S(sV)}, {S(sV)}, 0x8000
    s_addc_u32 {S(sV + 1)}, {S(sV + 1)}, 0
    """)
    for t in range(8):
        e(f"global_load_dwordx4 {V(KS0 + 4 * t, 4)}, {V(vG)}, {S(sK, 2)} offset:{512 * t}{opt.kvmod}")
    t = vT
    e(f"""
    v_lshrrev_b32 {V(t)}, 6, v0
    v_mov_b32 {V(vBAD)}, 0
    v_readfirstlane_b32 {S(sW)}, {V(t)}
    v_bfe_u32 {V(t)}, v0, 3, 1
    v_mul_u32_u24 {V(vKR)}, 4352, {V(t)}
    v_bfe_u32 {V(t)}, v0, 5, 1
    v_mul_u32_u24 {V(t)}, 1088, {V(t)}
    v_add_u32 {V(vKR)}, {V(vKR)}, {V(t)}
    v_and_b32 {V(t)}, 3, v0
    v_mul_u32_u24 {V(t)}, 272, {V(t)}
    v_add_u32 {V(vKR)}, {V(vKR)}, {V(t)}
    v_bfe_u32 {V(t)}, v0, 2, 1
    v_lshl_add_u32 {V(vKR)}, {V(t)}, 7, {V(vKR)}
    v_bfe_u32 {V(t)}, v0, 4, 1
    v_lshl_add_u32 {V(vKR)}, {V(t)}, 6, {V(vKR)}
    s_mul_i32 {S(sT0)}, {S(sW)}, 4352
    s_mov_b32 m0, {S(sT0)}
    v_and_b32 {V(t)}, 63, v0
    v_lshlrev_b32 {V(vVR)}, 4, {V(t)}
    v_add_u32 {V(vVR)}, {VB}, {V(vVR)}
    v_and_b32 {V(t)}, 1, v0
    v_mul_u32_u24 {V(vVW)}, 8256, {V(t)}
    v_lshrrev_b32 {V(t)}, 5, v0
    v_lshl_add_u32 {V(vVW)}, {V(t)}, 8, {V(vVW)}
    v_bfe_u32 {V(t)}, v0, 1, 4
    v_lshl_add_u32 {V(vVW)}, {V(t)}, 4, {V(vVW)}
    v_add_u32 {V(vVW)}, {VB}, {V(vVW)}
    v_and_b32 {V(t)}, 31, v0
    v_lshlrev_b32 {V(vKC)}, 4, {V(t)}
    v_add_u32 {V(vKC)}, {TB - 2 * REC}, {V(vKC)}
    v_bfe_u32 {V(t)}, v0, 4, 2
    v_lshlrev_b32 {V(vCT)}, 5, {V(t)}
    v_add_u32 {V(vCT)}, {TB - 2 * REC + 1024}, {V(vCT)}
    v_and_b32 {V(t + 1)}, 15, v0
    v_min_u32 {V(t + 1)}, 3, {V(t + 1)}
    v_lshlrev_b32 {V(t + 1)}, 4, {V(t + 1)}
    v_lshl_add_u32 {V(vXB)}, {V(t)}, 6, {V(t + 1)}
    v_add_u32 {V(vXB)}, {TB - 2 * REC + 1280}, {V(vXB)}
    s_mov_b32 {S(sPK)}, 0x47800000
    s_mov_b32 {S(sC0)}, {hex((SIG << 7) * 0x10001)}
    s_mov_b32 {S(sC0 + 1)}, {hex(f2u(CSC * 2.0 ** (149 - SIG)))}
    s_mov_b32 {S(sC0 + 2)}, {hex(f2u(-CSC * 2.0 ** (-SIG)))}
    s_mov_b32 {S(sC0 + 3)}, 0xffff0000
    s_mov_b32 {S(sCNT)}, 15
    """)
    e(f"""
    v_lshrrev_b32 {V(t + 3)}, 4, v0
    v_mul_u32_u24 {V(t)}, {REC}, {V(t + 3)}
    v_and_b32 {V(t + 3)}, 15, v0
    v_lshl_add_u32 {V(t)}, {V(t + 3)}, 5, {V(t)}
    v_add_u32 {V(t)}, {TB}, {V(t)}
    v_lshrrev_b32 {V(t + 3)}, 3, v0
    v_mul_u32_u24 {V(t + 1)}, {REC}, {V(t + 3)}
    v_and_b32 {V(t + 3)}, 7, v0
    v_lshl_add_u32 {V(t + 2)}, {V(t + 3)}, 6, {V(t + 1)}
    v_lshl_add_u32 {V(t + 1)}, {V(t + 3)}, 5, {V(t + 1)}
    v_add_u32 {V(t + 1)}, {TB + 1024}, {V(t + 1)}
    v_add_u32 {V(t + 2)}, {TB + 1280}, {V(t + 2)}
    """)
    for r in range(144):
        e(f"v_accvgpr_write_b32 {A(r)}, 0")
    TA, TBv, TM = VP0, VP0 + 8, CI0
    chk = t + 4
    e(f"v_mov_b32 {V(chk)}, 0")

    def kcoef(s):
        e.slot()
        for k in range(4):
            e(f"v_lshlrev_b32 {V(TM)}, 16, {V(KSA + 4 * s + k)}")
            e(f"v_and_b32 {V(TM + 1)}, {S(sC0 + 3)}, {V(KSA + 4 * s + k)}")
            e(f"v_lshlrev_b32 {V(TM + 2)}, 16, {V(KZA + 4 * s + k)}")
            e(f"v_and_b32 {V(TM + 3)}, {S(sC0 + 3)}, {V(KZA + 4 * s + k)}")
            for h in range(2):
                e(f"v_mul_f32 {V(TA + 2 * k + h)}, {S(sC0 + 1)}, {V(TM + h)}")
                e(f"v_mul_f32 {V(TM + h)}, {S(sC0 + 2)}, {V(TM + h)}")
                e(f"v_mul_f32 {V(TBv + 2 * k + h)}, {V(TM + h)}, {V(TM + 2 + h)}")
                e(f"v_fma_f32 {V(chk)}, {V(TA + 2 * k + h)}, 0, {V(chk)}")
                e(f"v_fma_f32 {V(chk)}, {V(TBv + 2 * k + h)}, 0, {V(chk)}")
        for h in range(2):
            e.add(lds(I(f"ds_write_b128 {V(t)}, {V(TA + 4 * h, 4)} offset:{s * 16 * REC + 16 * h}")))
            e.add(lds(I(f"ds_write_b128 {V(t)}, {V(TBv + 4 * h, 4)} offset:{s * 16 * REC + 512 + 16 * h}")))
    stamp(e, opt, 20)
    kcoef(0)
    stamp(e, opt, 21)
    e.slot()
    F, CT, RI, HI, LO = 40, 48, VP0, VP0 + 8, VP0 + 12
    for k in range(4):
        e(f"v_lshlrev_b32 {V(F + 2 * k)}, 16, {V(VSA + k)}")
        e(f"v_and_b32 {V(F + 2 * k + 1)}, {S(sC0 + 3)}, {V(VSA + k)}")
    for k in range(8):
        e(f"v_log_f32 {V(CT + k)}, {V(F + k)}")
        e(f"v_rcp_f32 {V(RI + k)}, {V(F + k)}")
    mn, mx = CI0, CI0 + 1
    e(f"""
    v_min3_u32 {V(mn)}, {V(F)}, {V(F + 1)}, {V(F + 2)}
    v_max3_u32 {V(mx)}, {V(F)}, {V(F + 1)}, {V(F + 2)}
    v_min3_u32 {V(mn)}, {V(F + 3)}, {V(F + 4)}, {V(mn)}
    v_max3_u32 {V(mx)}, {V(F + 3)}, {V(F + 4)}, {V(mx)}
    v_min3_u32 {V(mn)}, {V(F + 5)}, {V(F + 6)}, {V(mn)}
    v_max3_u32 {V(mx)}, {V(F + 5)}, {V(F + 6)}, {V(mx)}
    v_min_u32 {V(mn)}, {V(F + 7)}, {V(mn)}
    v_max_u32 {V(mx)}, {V(F + 7)}, {V(mx)}
    v_cmp_gt_u32 vcc, {hex(f2u(2.0 ** -16))}, {V(mn)}
    v_cndmask_b32 {V(vBAD)}, {V(vBAD)}, 1, vcc
    v_cmp_lt_u32 vcc, {hex(f2u(2.0 ** 8))}, {V(mx)}
    v_cndmask_b32 {V(vBAD)}, {V(vBAD)}, 1, vcc
    """)
    for k in range(8):
        e(f"v_add_f32 {V(CT + k)}, {hex(f2u(float(POFF)))}, {V(CT + k)}")
    for k in range(4):
        e(f"v_cvt_pk_bf16_f32 {V(HI + k)}, {V(RI + 2 * k)}, {V(RI + 2 * k + 1)}")
    for k in range(4):
        e(f"v_lshlrev_b32 {V(F)}, 16, {V(HI + k)}")
        e(f"v_and_b32 {V(F + 1)}, {S(sC0 + 3)}, {V(HI + k)}")
        e(f"v_sub_f32 {V(F)}, {V(RI + 2 * k)}, {V(F)}")
        e(f"v_sub_f32 {V(F + 1)}, {V(RI + 2 * k + 1)}, {V(F + 1)}")
        e(f"v_cvt_pk_bf16_f32 {V(LO + k)}, {V(F)}, {V(F + 1)}")
    for k in range(4):
        e(f"v_mov_b32 {V(F + k)}, 0")
    e.add(lds(I(f"ds_write_b128 {V(t + 1)}, {V(CT, 4)}")))
    e.add(lds(I(f"ds_write_b128 {V(t + 1)}, {V(CT + 4, 4)} offset:16")))
    e.add(lds(I(f"ds_write_b128 {V(t + 2)}, {V(HI, 4)}")))
    e.add(lds(I(f"ds_write_b128 {V(t + 2)}, {V(LO, 4)} offset:16")))
    e.add(lds(I(f"ds_write_b128 {V(t + 2)}, {V(VZA, 4)} offset:32")))
    e.add(lds(I(f"ds_write_b128 {V(t + 2)}, {V(F, 4)} offset:48")))
    kcoef(1)
    e(f"""
    v_cmp_u_f32 vcc, {V(chk)}, {V(chk)}
    v_cndmask_b32 {V(vBAD)}, {V(vBAD)}, 1, vcc
    """)
    e.slot()
    stamp(e, opt, 22)
    e("s_barrier")
    stamp(e, opt, 23)
    e(f"ds_read_b128 {V(KC0, 4)}, {V(vKC)} offset:{2 * REC}")
    e(f"ds_read_b128 {V(KC0 + 4, 4)}, {V(vKC)} offset:{2 * REC + 512}")
    e(f"ds_read_b128 {V(CI0, 4)}, {V(vCT)} offset:{2 * REC}")
    for tk in range(8):
        e.slot()
        b = K0 + 4 * tk
        for p in range(2):
            e(f"v_pk_fma_f32 {V(b + 2 * p, 2)}, {V(b + 2 * p, 2)}, {V(KC0 + 2 * p, 2)}, {V(KC0 + 4 + 2 * p, 2)}")
        for p in range(2):
            e(f"v_cvt_pk_bf16_f32 {V(b + 2 * p)}, {V(b + 2 * p)}, {V(b + 2 * p + 1)}")
        for p in range(2):
            e.add(k_write(0, tk, p, b + 2 * p))
    e.slot()
    stamp(e, opt, 24)
    e("s_barrier")
    stamp(e, opt, 25)
    for ks in range(4):
        e.add(k_read(0, 0, ks, A(KF(0, ks), 4)))
    e(f"v_mov_b32 {V(vT + 6)}, 0")
    fix_q(e, S0, True)
    e(f"""
    v_and_b32 {V(vT + 6)}, 0x80008000, {V(vT + 6)}
    v_or_b32 {V(vBAD)}, {V(vBAD)}, {V(vT + 6)}
    """)
    if opt.stamp:
        e("s_memtime s[66:67]\nv_and_b32 v54, 63, v0")
    e.slot()
    return e.c


def out_addr(e):
    e(f"""
    v_and_b32 {V(vT + 2)}, 63, v0
    v_lshlrev_b32 {V(vT + 2)}, 4, {V(vT + 2)}
    v_lshrrev_b32 {V(vT + 3)}, 6, v0
    v_lshl_add_u32 {V(vT + 2)}, {V(vT + 3)}, 14, {V(vT + 2)}
    v_add_u32 {V(vT)}, 0x1000, {V(vT + 2)}
    v_add_u32 {V(vT + 1)}, 0x3000, {V(vT + 2)}
    """)


def epilogue(opt):
    e = Lin()
    if opt.stamp:
        e("s_memtime s[68:69]")
    out_addr(e)
    mn, mx, chk = vT + 2, vT + 3, vT + 4
    X, L, CA, CB = 16, 20, 24, 28
    e(f"""
    v_mov_b32 {V(mn)}, -1
    v_mov_b32 {V(mx)}, 0
    v_mov_b32 {V(chk)}, 0
    s_movk_i32 {S(sC0)}, 133
    """)
    dpp = "row_mask:0xf bank_mask:0xf"
    for qb in range(4):
        for r in range(4):
            e(f"v_accvgpr_read_b32 {V(X + r)}, {A(X0 + 4 * qb + r)}")
        for r in range(4):
            e(f"v_mov_b32_dpp {V(L + r)}, {V(X + r)} row_newbcast:0 {dpp}")
        for r in range(4):
            e(f"v_add_f32_dpp {V(L + r)}, {V(X + r)}, {V(L + r)} row_newbcast:1 {dpp}")
        for r in range(4):
            e(f"v_mov_b32_dpp {V(CB + r)}, {V(X + r)} row_newbcast:2 {dpp}")
        for r in range(4):
            e(f"v_rcp_f32 {V(CA + r)}, {V(L + r)}")
        e(f"""
        v_min3_u32 {V(mn)}, {V(L)}, {V(L + 1)}, {V(mn)}
        v_max3_u32 {V(mx)}, {V(L)}, {V(L + 1)}, {V(mx)}
        v_min3_u32 {V(mn)}, {V(L + 2)}, {V(L + 3)}, {V(mn)}
        v_max3_u32 {V(mx)}, {V(L + 2)}, {V(L + 3)}, {V(mx)}
        """)
        for r in range(4):
            e(f"v_mul_f32 {V(CB + r)}, {V(CB + r)}, {V(CA + r)}")
        for r in range(4):
            e(f"v_ldexp_f32 {V(CA + r)}, {V(CA + r)}, {S(sC0)}")
        for r in range(4):
            e(f"v_fma_f32 {V(chk)}, {V(CB + r)}, 0, {V(chk)}")
        for r in range(4):
            T = S0 + 8 * ((qb * 4 + r) % 8)
            D = P0 + 4 * ((qb * 4 + r) % 8)
            for db in range(8):
                e(f"v_accvgpr_read_b32 {V(T + db)}, {A(Oreg(db, qb) + r)}")
            for db in range(8):
                e(f"v_fma_f32 {V(T + db)}, {V(T + db)}, {V(CA + r)}, -{V(CB + r)}")
            if qb == 0 and r == 0:
                for db in range(8):
                    e(f"v_fma_f32 {V(chk)}, {V(T + db)}, 0, {V(chk)}")
            for k in range(4):
                e(f"v_cvt_pk_bf16_f32 {V(D + k)}, {V(T + 2 * k)}, {V(T + 2 * k + 1)}")
            e(f"global_store_dwordx4 {V(vT + qb // 2)}, {V(D, 4)}, {S(sO, 2)} offset:{(qb % 2) * 4096 - 4096 + 1024 * r}{opt.omod}")
    e(f"""
    v_cmp_gt_u32 vcc, {hex(f2u(2.0 ** (POFF - 10)))}, {V(mn)}
    v_cndmask_b32 {V(vBAD)}, {V(vBAD)}, 1, vcc
    v_cmp_lt_u32 vcc, {hex(f2u(2.0 ** (POFF + 40)))}, {V(mx)}
    v_cndmask_b32 {V(vBAD)}, {V(vBAD)}, 1, vcc
    v_cmp_u_f32 vcc, {V(chk)}, {V(chk)}
    v_cndmask_b32 {V(vBAD)}, {V(vBAD)}, 1, vcc
    """)
    if opt.force_slow:
        e(f"v_mov_b32 {V(vBAD)}, 1")
    e(f"""
    v_cmp_ne_u32 vcc, 0, {V(vBAD)}
    s_or_b32 {S(sT0)}, vcc_lo, vcc_hi
    s_lshl_b32 {S(sT1)}, {S(sW)}, 2
    s_add_u32 {S(sT1)}, {S(sT1)}, {FLAG}
    v_mov_b32 {V(X)}, {S(sT0)}
    v_mov_b32 {V(X + 1)}, {S(sT1)}
    v_mov_b32 {V(X + 2)}, {FLAG}
    """)
    e.c[-6].rd = ['vcc']
    e.add(lds(I(f"ds_write_b32 {V(X + 1)}, {V(X)}")))
    e.slot()
    e("s_barrier")
    e(f"ds_read_b128 {V(L, 4)}, {V(X + 2)}")
    e.slot()
    e(f"""
    v_or_b32 {V(L)}, {V(L)}, {V(L + 1)}
    v_or3_b32 {V(L)}, {V(L)}, {V(L + 2)}, {V(L + 3)}
    v_readfirstlane_b32 {S(sT0)}, {V(L)}
    """)
    if opt.stamp:
        e(f"""
        s_waitcnt vmcnt(0)
        s_memtime s[70:71]
        s_memrealtime s[72:73]
        s_waitcnt lgkmcnt(0)
        s_sub_u32 s66, s66, s64
        s_sub_u32 s68, s68, s64
        s_sub_u32 s70, s70, s64
        v_mov_b32 v16, s66
        v_mov_b32 v17, s68
        v_mov_b32 v18, s70
        v_mov_b32 v19, s62
        v_mov_b32 v20, s72
        v_mov_b32 v21, 0
        v_mov_b32 v22, 0
        v_mov_b32 v23, 0
        s_lshl_b32 s74, s2, 2
        s_add_u32 s74, s74, {S(sW)}
        s_lshl_b32 s74, s74, 5
        v_mov_b32 v24, s74
        global_store_dwordx4 v24, v[16:19], s[60:61]
        global_store_dwordx4 v24, v[20:23], s[60:61] offset:16
        v_and_b32 v25, 63, v0
        v_lshlrev_b32 v25, 2, v25
        s_lshl_b32 s74, s74, 3
        s_add_u32 s74, s74, 0x10000
        v_add_u32 v25, s74, v25
        global_store_dword v25, v9, s[60:61]
        """)
    e(f"""
    s_cmp_eq_u32 {S(sT0)}, 0
    s_cbranch_scc1 L_end
    """)
    return e.c


def careful(opt):
    blocks = []
    sPASS, sTILE, sC, sM = 34, 35, 36, 37
    sKt, sVt = 38, 40
    M0 = 44
    ONES = XB0
    aKC, aVC = 48, 49
    e = Lin()
    e("L_careful:")
    e("s_waitcnt vmcnt(0) lgkmcnt(0)")
    q_addr(e)
    load_q(e, S0)
    e(f"""
    s_mov_b32 {S(sPASS)}, 0
    s_mov_b32 {S(sC)}, {hex(f2u(CSC))}
    s_mov_b32 {S(sM)}, 0xffff0000
    s_waitcnt vmcnt(0)
    """)
    fix_q(e, S0, False)
    for r in range(144):
        e(f"v_accvgpr_write_b32 {A(r)}, 0")
    for k in range(4):
        e(f"v_mov_b32 {V(M0 + k)}, 0xff800000")
        e(f"v_mov_b32 {V(ONES + k)}, 0x3f803f80")
    e("s_nop 7")
    blocks.append(e.c)

    e = Lin()
    e("L_c_pass:")
    e(f"""
    s_mov_b32 {S(sTILE)}, 0
    s_mov_b64 {S(sKt, 2)}, {S(sK0, 2)}
    s_mov_b64 {S(sVt, 2)}, {S(sV0, 2)}
    v_and_b32 {V(aKC)}, 31, v0
    v_lshlrev_b32 {V(aKC)}, 3, {V(aKC)}
    v_lshrrev_b32 {V(aVC)}, 5, v0
    v_lshlrev_b32 {V(aVC)}, 4, {V(aVC)}
    """)
    blocks.append(e.c)

    def rnd(e, a, b):
        e(f"v_cvt_pk_bf16_f32 {V(b)}, {V(a)}, {V(b)}")
        e(f"v_lshlrev_b32 {V(a)}, 16, {V(b)}")
        e(f"v_and_b32 {V(b)}, {S(sM)}, {V(b)}")

    e = Lin()
    e("L_c_tile:")
    KSr, KZr, VSr, VZr = 16, 18, 20, 24
    U = 28
    for t in range(8):
        e(f"global_load_dwordx4 {V(KS0 + 4 * t, 4)}, {V(vG)}, {S(sKt, 2)} offset:{512 * t}")
        e(f"global_load_dwordx4 {V(VS0 + 4 * t, 4)}, {V(vG)}, {S(sVt, 2)} offset:{512 * t}")
    e(f"""
    global_load_dwordx2 {V(KSr, 2)}, {V(aKC)}, {S(sKS, 2)}
    global_load_dwordx2 {V(KZr, 2)}, {V(aKC)}, {S(sKZ, 2)}
    global_load_dwordx4 {V(VSr, 4)}, {V(aVC)}, {S(sVS, 2)}
    global_load_dwordx4 {V(VZr, 4)}, {V(aVC)}, {S(sVZ, 2)}
    s_add_u32 {S(sKt)}, {S(sKt)}, 0x8000
    s_addc_u32 {S(sKt + 1)}, {S(sKt + 1)}, 0
    s_add_u32 {S(sVt)}, {S(sVt)}, 0x8000
    s_addc_u32 {S(sVt + 1)}, {S(sVt + 1)}, 0
    v_add_u32 {V(aKC)}, 256, {V(aKC)}
    v_add_u32 {V(aVC)}, 128, {V(aVC)}
    s_waitcnt vmcnt(0)
    """)
    for k in range(2):
        e(f"v_lshlrev_b32 {V(U + 2 * k)}, 16, {V(KSr + k)}")
        e(f"v_and_b32 {V(U + 2 * k + 1)}, {S(sM)}, {V(KSr + k)}")
        e(f"v_lshlrev_b32 {V(U + 4 + 2 * k)}, 16, {V(KZr + k)}")
        e(f"v_and_b32 {V(U + 4 + 2 * k + 1)}, {S(sM)}, {V(KZr + k)}")
    for t in range(8):
        for p in range(2):
            a = KS0 + 4 * t + 2 * p
            e(f"v_cvt_f32_i32 {V(a)}, {V(a)}")
            e(f"v_cvt_f32_i32 {V(a + 1)}, {V(a + 1)}")
            rnd(e, a, a + 1)
            e(f"v_sub_f32 {V(a)}, {V(a)}, {V(U + 4 + 2 * p)}")
            e(f"v_sub_f32 {V(a + 1)}, {V(a + 1)}, {V(U + 4 + 2 * p + 1)}")
            rnd(e, a, a + 1)
            e(f"v_mul_f32 {V(a)}, {V(a)}, {V(U + 2 * p)}")
            e(f"v_mul_f32 {V(a + 1)}, {V(a + 1)}, {V(U + 2 * p + 1)}")
            e(f"v_cvt_pk_bf16_f32 {V(a)}, {V(a)}, {V(a + 1)}")
    for k in range(4):
        e(f"v_lshlrev_b32 {V(U + 2 * k)}, 16, {V(VSr + k)}")
        e(f"v_and_b32 {V(U + 2 * k + 1)}, {S(sM)}, {V(VSr + k)}")
        e(f"v_lshlrev_b32 {V(U + 8 + 2 * k)}, 16, {V(VZr + k)}")
        e(f"v_and_b32 {V(U + 8 + 2 * k + 1)}, {S(sM)}, {V(VZr + k)}")
    for p in range(4):
        for j in range(4):
            a, b = VS0 + 8 * p + j, VS0 + 8 * p + 4 + j
            e(f"v_cvt_f32_i32 {V(a)}, {V(a)}")
            e(f"v_cvt_f32_i32 {V(b)}, {V(b)}")
            rnd(e, a, b)
            e(f"v_sub_f32 {V(a)}, {V(a)}, {V(U + 8 + 2 * p)}")
            e(f"v_sub_f32 {V(b)}, {V(b)}, {V(U + 8 + 2 * p + 1)}")
            rnd(e, a, b)
            e(f"v_mul_f32 {V(a)}, {V(a)}, {V(U + 2 * p)}")
            e(f"v_mul_f32 {V(b)}, {V(b)}, {V(U + 2 * p + 1)}")
            e(f"v_cvt_pk_bf16_f32 {V(VP0 + 4 * j + p)}, {V(a)}, {V(b)}")
    e("s_waitcnt lgkmcnt(0)\ns_barrier")
    for t in range(8):
        for p in range(2):
            e.add(k_write(0, t, p, KS0 + 4 * t + 2 * p))
    for j in range(4):
        e.add(v_write(0, j, VP0 + 4 * j))
    e("s_waitcnt lgkmcnt(0)\ns_barrier")
    for tb in range(4):
        for ks in range(4):
            e.add(k_read(0, tb, ks, A(KF(0, ks), 4)))
        e("s_waitcnt lgkmcnt(0)")
        for qb in range(4):
            for ks in range(4):
                c = "0" if ks == 0 else V(Sreg(tb, qb), 4)
                e(f"{MF} {V(Sreg(tb, qb), 4)}, {A(KF(0, ks), 4)}, {A(Qreg(qb, ks), 4)}, {c}")
        e("s_nop 7")
    e(f"""
    s_nop 7
    s_cmp_lg_u32 {S(sPASS)}, 0
    s_cbranch_scc1 L_c_acc
    """)
    for tb in range(4):
        for qb in range(4):
            s = Sreg(tb, qb)
            e(f"v_max3_f32 {V(M0 + qb)}, {V(s)}, {V(s + 1)}, {V(M0 + qb)}")
            e(f"v_max3_f32 {V(M0 + qb)}, {V(s + 2)}, {V(s + 3)}, {V(M0 + qb)}")
    e("s_branch L_c_next")
    blocks.append(e.c)

    e = Lin()
    e("L_c_acc:")
    for tb in range(4):
        for qb in range(4):
            s = Sreg(tb, qb)
            for r in range(4):
                e(f"v_sub_f32 {V(s + r)}, {V(s + r)}, {V(M0 + qb)}")
            for r in range(4):
                e(f"v_mul_f32 {V(s + r)}, {S(sC)}, {V(s + r)}")
            for r in range(4):
                e(f"v_exp_f32 {V(s + r)}, {V(s + r)}")
            for h in range(2):
                e(f"v_cvt_pk_bf16_f32 {V(Preg(qb, tb // 2) + 2 * (tb % 2) + h)}, {V(s + 2 * h)}, {V(s + 2 * h + 1)}")
    for blk in range(9):
        if blk < 8:
            for kk in range(2):
                e.add(v_read(0, blk, kk, A(VF(0, kk), 4)))
            e("s_waitcnt lgkmcnt(0)")
        for qb in range(4):
            for kk in range(2):
                d = A(Oreg(blk, qb), 4) if blk < 8 else A(X0 + 4 * qb, 4)
                b = A(VF(0, kk), 4) if blk < 8 else V(ONES, 4)
                e(f"{MF} {d}, {V(Preg(qb, kk), 4)}, {b}, {d}")
        e("s_nop 7")
    blocks.append(e.c)

    e = Lin()
    e("L_c_next:")
    e(f"""
    s_nop 7
    s_add_u32 {S(sTILE)}, {S(sTILE)}, 1
    s_cmp_lt_u32 {S(sTILE)}, 32
    s_cbranch_scc1 L_c_tile
    s_cmp_lg_u32 {S(sPASS)}, 0
    s_cbranch_scc1 L_c_out
    """)
    for qb in range(4):
        for sw in ("v_permlane32_swap_b32", "v_permlane16_swap_b32"):
            e(f"v_mov_b32 {V(16)}, {V(M0 + qb)}")
            e(f"{sw} {V(M0 + qb)}, {V(16)}")
            e(f"v_max_f32 {V(M0 + qb)}, {V(M0 + qb)}, {V(16)}")
    e(f"""
    s_mov_b32 {S(sPASS)}, 1
    s_branch L_c_pass
    """)
    blocks.append(e.c)

    e = Lin()
    e("L_c_out:")
    out_addr(e)
    CA = 24
    for qb in range(4):
        for r in range(4):
            e(f"v_accvgpr_read_b32 {V(CA + r)}, {A(X0 + 4 * qb + r)}")
        for r in range(4):
            e(f"v_rcp_f32 {V(CA + r)}, {V(CA + r)}")
        for r in range(4):
            T = S0 + 8 * ((qb * 4 + r) % 8)
            D = P0 + 4 * ((qb * 4 + r) % 8)
            for db in range(8):
                e(f"v_accvgpr_read_b32 {V(T + db)}, {A(Oreg(db, qb) + r)}")
            for db in range(8):
                e(f"v_mul_f32 {V(T + db)}, {V(T + db)}, {V(CA + r)}")
            for k in range(4):
                e(f"v_cvt_pk_bf16_f32 {V(D + k)}, {V(T + 2 * k)}, {V(T + 2 * k + 1)}")
            e(f"global_store_dwordx4 {V(vT + qb // 2)}, {V(D, 4)}, {S(sO, 2)} offset:{(qb % 2) * 4096 - 4096 + 1024 * r}")
    blocks.append(e.c)
    out = []
    for b in blocks:
        b = [x for x in b if x.kind != 'slot']
        fix_hazards_linear(b)
        place_waits(b, fix=False)
        out += b
    return out


def build(opt):
    tab = TabState(-2)
    pro = prologue(opt)
    itm1 = Iter(-1, tab, opt)
    base0 = dict(tab.base)
    it0 = Iter(0, tab, opt, loop=True)
    it1 = Iter(1, tab, opt, loop=True)
    assert all(tab.base[r] == base0[r] + 2 for r in base0)
    tab.base = {r: v + 28 for r, v in tab.base.items()}
    it30 = Iter(30, tab, opt)
    it31 = Iter(31, tab, opt)
    epi = epilogue(opt)
    head, tail = I("L_loop:"), I("s_cbranch_scc1 L_loop")
    align = I(".p2align 3")

    lst = []
    if opt.stamp:
        lst = [I("s_memtime s[76:77]"), I("s_waitcnt lgkmcnt(0)"), I("s_sub_u32 s76, s76, s64"), I("v_mov_b32 v55, s76"), I(f"v_cmp_eq_u32 vcc, {S(sCNT)}, v54"), I("s_nop 1"), I("v_cndmask_b32 v9, v9, v55, vcc")]
    pre30 = Lin(); stamp(pre30, opt, 0)
    pre31 = Lin(); stamp(pre31, opt, 26)

    def assemble():
        front = pro + itm1.code()
        body = lst + it0.code() + it1.code()
        back = pre30.c + it30.code() + pre31.c + it31.code() + epi
        return front, body, back

    def trace(front, body, back, trips=3):
        return front + (body + [tail]) * trips + back
    front, body, back = assemble()
    for _ in range(6):
        if place_waits(trace(front, body, back)) == 0:
            break
    for it in (itm1, it0, it1, it30, it31):
        it.place_salu()
    front, body, back = assemble()
    fix_hazards_linear(front)
    fix_hazards_linear(back)
    for trips in (1, 2, 3):
        tr = trace(front, body, back, trips)
        place_waits(tr, fix=False)
        bad = check_hazards(tr)
        for b in bad:
            print("HAZARD", b, file=sys.stderr)
        assert not bad
    print("issue-cycle estimate: front", issue_cycles(front), "body/2", issue_cycles(body + body) / 4, "back", issue_cycles(back), file=sys.stderr)
    code = front + [align, head] + body + [tail] + back + careful(opt) + [I("L_end:")]
    return code


HEADER = open(__file__.rsplit('/', 1)[0] + '/header.txt').read() if '/' in __file__ else open('header.txt').read()


def main():
    ap = argparse.ArgumentParser()
    ap.add_argument('-o', default='cdna_kernels/' + NAME + '.s')
    ap.add_argument('--stamp', action='store_true')
    ap.add_argument('--force-slow', action='store_true')
    ap.add_argument('--kvmod', default='')
    ap.add_argument('--qmod', default='')
    ap.add_argument('--omod', default='')
    opt = ap.parse_args()
    for k in ('kvmod', 'qmod', 'omod'):
        v = getattr(opt, k)
        setattr(opt, k, ' ' + v.replace(',', ' ') if v else '')
    code = build(opt)
    s = HEADER.replace('@LDS@', str(LDS_BYTES))
    s += f""".amdgcn_target "amdgcn-amd-amdhsa--gfx950"
.text
.globl {NAME}_kernel
.p2align 8
.type {NAME}_kernel,@function
{NAME}_kernel:
"""
    s += render(code)
    s += f"""    s_endpgm
.section .rodata,"a"
.p2align 6
.amdhsa_kernel {NAME}_kernel
  .amdhsa_next_free_vgpr 512
  .amdhsa_next_free_sgpr 102
  .amdhsa_accum_offset 256
  .amdhsa_group_segment_fixed_size 0
  .amdhsa_kernarg_size 80
  .amdhsa_user_sgpr_count 2
  .amdhsa_user_sgpr_kernarg_segment_ptr 1
  .amdhsa_system_sgpr_workgroup_id_x 1
  .amdhsa_float_denorm_mode_32 3
.end_amdhsa_kernel
"""
    open(opt.o, 'w').write(s)


if __name__ == '__main__':
    main()
```

```python
import sys, struct, math, argparse
from asmlib import *

NAME = "standalone__kv_cache_quant_int4_int2_kv_with_per_channel_or_per_token_scales__prompt"


def f2u(x):
    return struct.unpack('<I', struct.pack('<f', x))[0]


KSZ = 17408
VB = 2 * KSZ
VSZ = 16512
TB = VB + 2 * VSZ
REC = 1792
FLAG = TB + 32 * REC
LDS_BYTES = FLAG + 64
vG, vKR, vVR, vVW, vKC, vCT, vXB = 1, 2, 3, 4, 5, 6, 7
vBAD = 8
vT = 10
XB0 = 56
S0, P0, KS0, VS0, VP0, CI0, KC0 = 64, 128, 160, 192, 224, 240, 248
O0, X0, Q0, KF0, VF0 = 0, 128, 144, 208, 240
sQ, sK, sV, sKS, sKZ, sVS, sVZ, sO = 4, 6, 8, 10, 12, 14, 16, 18
sH, sQB, sW, sCNT, sPK, sINC, sT0, sT1 = 20, 21, 22, 23, 24, 25, 26, 27
sK0, sV0 = 28, 30
sC0 = 32

CSC = math.log2(math.e) / math.sqrt(128.0)
SIG = 32
POFF = 64


def Sreg(tb, qb): return S0 + (tb * 4 + qb) * 4
def Preg(qb, kk): return P0 + (qb * 2 + kk) * 4
def Oreg(db, qb): return O0 + (db * 4 + qb) * 4
def Qreg(qb, ks): return Q0 + (qb * 4 + ks) * 4
def KF(buf, ks): return KF0 + (buf * 4 + ks) * 4
def VF(buf, kk): return VF0 + (buf * 2 + kk) * 4


MF = "v_mfma_f32_16x16x32_bf16"


def lds(ins):
    ins.pre_barrier = True
    return ins


def k_read(buf, tb, ks, dst):
    off = buf * KSZ + (tb // 2) * 8704 + (tb % 2) * 2176 + 16 * ks
    return lds(I(f"ds_read_b128 {dst}, {V(vKR)} offset:{off}"))


def v_read(buf, db, kk, dst):
    off = buf * VSZ + (db * 2 + kk) * 1024 + (db // 4) * 64
    return lds(I(f"ds_read_b128 {dst}, {V(vVR)} offset:{off}"))


def k_write(buf, e, p, src):
    off = buf * KSZ + ((e // 4) * 2 + p) * 1088 + (e % 4) * 272
    return lds(I(f"ds_write_addtid_b32 {V(src)} offset:{off}"))


def v_write(buf, j, src):
    return lds(I(f"ds_write_b128 {V(vVW)}, {V(src, 4)} offset:{buf * VSZ + j * 2048}"))


def gap_pattern(opt):
    g = [[] for _ in range(136)]
    memA = (['Kf'] * 4 + ['Ci'] + ['gV'] * 3) * 2 + ['Kf'] * 4 + ['Ci'] + ['gV'] * 2 + ['Kc'] + ['Vf'] * 4 + ['Kc', 'Ad']
    mi = 0
    for c in range(16):
        n = 4 * c
        other = ['Vp', 'Vp'] if c < 4 else ['E']
        if c < 15:
            g[n + 0] = [memA[mi], 'C']
            g[n + 1] = list(other)
            g[n + 2] = [memA[mi + 1], 'C']
            g[n + 3] = list(other)
            mi += 2
        else:
            for k in range(4):
                g[n + k] = ['E']
    B = [None] * 72
    B[0] = ['Xb', 'Xb']
    for b in range(1, 7):
        B[8 * b] = ['Vf', 'Vf']
    grp = [['W', 'Kp', 'Kp', 'Kp', 'Kp'], ['Kv', 'Kv'], ['a', 'Kv'], ['a', 'Kv'], ['gK', 'a'], ['a', 'gK']]
    for t, start in enumerate((1, 13, 25, 37)):
        m = start
        for k, x in enumerate(grp):
            while B[m] is not None:
                m += 1
            if k == 0:
                assert m % 2 == 1
            B[m] = list(x)
            m += 2 if k != 0 else 1
    B[56] = ['BAR', 'Kf', 'Kf']
    B[57] = ['Kf', 'Kf']
    B[58] = ['Ci', 'Ad']
    B[66] = ['C', 'C']
    for m in range(72):
        if B[m] is None:
            B[m] = ['E']
    ne = sum(x.count('E') for x in g) + sum(x.count('E') for x in B)
    m = 71
    while ne < 64:
        B[m].append('E')
        ne += 1
        m -= 2
    assert ne == 64
    B[69].append('Ad')
    for m in range(72):
        g[64 + m] = B[m]
    return g


class TabState:
    def __init__(self, base):
        self.base = {vKC: base, vCT: base, vXB: base}


def iteration(i, tab, opt, loop=False):
    doQK = i + 1 <= 31
    doPV = i >= 0
    doK = i + 2 <= 31
    doV = i + 1 <= 31
    ldK = i + 3 <= 31 or loop
    ldV = i + 2 <= 31
    kb = (i + 1) % 2
    vb = i % 2
    st = {}
    st['E'] = [I(f"v_exp_f32 {V(S0 + r)}, {V(S0 + r)}") if doQK else None for r in range(64)]

    def cvt(c, h):
        tb, qb = c // 4, c % 4
        return I(f"v_cvt_pk_bf16_f32 {V(Preg(qb, tb // 2) + 2 * (tb % 2) + h)}, {V(Sreg(tb, qb) + 2 * h)}, {V(Sreg(tb, qb) + 2 * h + 1)}")
    st['C'] = [cvt(c, h) if doPV else None for c in range(1, 16) for h in range(2)] + [cvt(0, h) if doQK else None for h in range(2)]
    st['Kf'] = [k_read(kb, tb, ks, A(KF(tb % 2, ks), 4)) if doQK else None for tb in (1, 2, 3) for ks in range(4)] + \
               [k_read(i % 2, 0, ks, A(KF(0, ks), 4)) if doK else None for ks in range(4)]
    st['Vf'] = [v_read(vb, db, kk, A(VF(db % 2, kk), 4)) if doPV else None for db in range(8) for kk in range(2)]
    st['Ci'] = [(vCT, i + 1, (tb // 2) * 128 + (tb % 2) * 16, CI0 + 4 * (tb % 2)) if doQK else None for tb in (1, 2, 3)] + \
               [(vCT, i + 2, 0, CI0) if doK else None]
    st['Kc'] = [(vKC, i + 2, 512 * h, KC0 + 4 * h) if doK else None for h in range(2)]
    st['Xb'] = [(vXB, i, 256 * kk, XB0 + 4 * kk) if doPV else None for kk in range(2)]
    st['Vp'] = [I(f"v_fma_f32 {V(VP0 + 4 * j + p)}, {V(VS0 + 4 * (2 * p + 1) + j)}, {S(sPK)}, {V(VS0 + 4 * (2 * p) + j)}") if doV else None
                for p in range(4) for j in range(4)]
    st['W'] = [v_write((i + 1) % 2, j, VP0 + 4 * j) if doV else None for j in range(4)]
    st['gV'] = [I(f"global_load_dwordx4 {V(VS0 + 4 * e, 4)}, {V(vG)}, {S(sV, 2)} offset:{512 * e}{opt.kvmod}") if ldV else None for e in range(8)]
    st['gK'] = [I(f"global_load_dwordx4 {V(KS0 + 4 * e, 4)}, {V(vG)}, {S(sK, 2)} offset:{512 * e}{opt.kvmod}") if ldK else None for e in range(8)]
    st['Kp'] = [I(f"v_pk_fma_f32 {V(KS0 + 4 * e + 2 * p, 2)}, {V(KS0 + 4 * e + 2 * p, 2)}, {V(KC0 + 2 * p, 2)}, {V(KC0 + 4 + 2 * p, 2)}") if doK else None
                for e in range(8) for p in range(2)]
    st['Kv'] = [I(f"v_cvt_pk_bf16_f32 {V(KS0 + 4 * e + 2 * p)}, {V(KS0 + 4 * e + 2 * p)}, {V(KS0 + 4 * e + 2 * p + 1)}") if doK else None
                for e in range(8) for p in range(2)]
    st['a'] = [k_write(i % 2, e, p, KS0 + 4 * e + 2 * p) if doK else None for e in range(8) for p in range(2)]
    st['BAR'] = [I("s_barrier") if (doK or doV) else None]
    adv = (i % 2 == 1) and i < 30
    st['Ad'] = [r if adv else None for r in (vKC, vXB, vCT)]
    mf = []
    for n in range(64):
        tb, qb, ks = n // 16, (n // 4) % 4, n % 4
        c = V(CI0 + 4 * (tb % 2), 4) if ks == 0 else V(Sreg(tb, qb), 4)
        mf.append(I(f"{MF} {V(Sreg(tb, qb), 4)}, {A(KF(tb % 2, ks), 4)}, {A(Qreg(qb, ks), 4)}, {c}") if doQK else None)
    for m in range(72):
        blk, qb, kk = m // 8, (m // 2) % 4, m % 2
        d = A(Oreg(blk, qb), 4) if blk < 8 else A(X0 + 4 * qb, 4)
        b = A(VF(blk % 2, kk), 4) if blk < 8 else V(XB0 + 4 * kk, 4)
        mf.append(I(f"{MF} {d}, {V(Preg(qb, kk), 4)}, {b}, {d}") if doPV else None)
    salu = []
    if ldV:
        salu.append((48, 130, [f"s_add_u32 {S(sV)}, {S(sV)}, 0x8000", f"s_addc_u32 {S(sV + 1)}, {S(sV + 1)}, 0"]))
    if ldK:
        if loop and i % 2 == 1:
            salu.append((2, 60, [f"s_cmp_eq_u32 {S(sCNT)}, 1", f"s_cselect_b32 {S(sINC)}, 0, 0x8000",
                                 f"s_add_u32 {S(sK)}, {S(sK)}, {S(sINC)}", f"s_addc_u32 {S(sK + 1)}, {S(sK + 1)}, 0"]))
        else:
            salu.append((2, 60, [f"s_add_u32 {S(sK)}, {S(sK)}, 0x8000", f"s_addc_u32 {S(sK + 1)}, {S(sK + 1)}, 0"]))
    if loop and i % 2 == 1:
        salu.append((124, 134, [f"s_sub_u32 {S(sCNT)}, {S(sCNT)}, 1", f"s_cmp_lg_u32 {S(sCNT)}, 0"]))
    pat = gap_pattern(opt)
    pos = {k: 0 for k in st}
    gaps = []
    for n in range(136):
        g = []
        for k in pat[n]:
            x = st[k][pos[k]]
            pos[k] += 1
            if x is None:
                continue
            if k in ('Ci', 'Kc', 'Xb'):
                reg, tile, off, dst = x
                x = I(f"ds_read_b128 {V(dst, 4)}, {V(reg)} offset:{(tile - tab.base[reg]) * REC + off}")
            elif k == 'Ad':
                tab.base[x] += 2
                x = I(f"v_add_u32 {V(x)}, {2 * REC}, {V(x)}")
            g.append(x)
        gaps.append(g)
    for k in st:
        assert pos[k] == len(st[k]), (k, pos[k], len(st[k]))
    return mf, gaps, salu


class Iter:
    def __init__(self, i, tab, opt, loop=False):
        self.mf, self.gaps, self.salu = iteration(i, tab, opt, loop)
        self.slots = [Slot() for _ in range(136)]
        self.extra = [[] for _ in range(136)]
        self.loop = loop

    def code(self):
        out = []
        for n in range(136):
            if self.mf[n] is not None:
                out.append(self.mf[n])
            g = self.gaps[n]
            if g and g[0].kind == 'barrier':
                out += g
            else:
                out.append(self.slots[n])
                out += self.extra[n]
                out += g
        return out

    def place_salu(self):
        busy = [self.slots[n].active() or (self.gaps[n] and self.gaps[n][0].kind == 'barrier') for n in range(136)]
        lo_all = 0
        for lo, hi, lst in sorted(self.salu):
            n = max(lo, lo_all)
            for t in lst:
                while busy[n]:
                    n += 1
                assert n <= hi, (lo, hi, lst)
                self.extra[n].append(I(t))
                busy[n] = True
            lo_all = n


class Lin:
    def __init__(self):
        self.c = []

    def __call__(self, t):
        for line in t.strip().split('\n'):
            line = line.strip()
            if line:
                self.c.append(I(line))
        return self.c[-1]

    def slot(self):
        self.c.append(Slot())

    def add(self, ins):
        self.c.append(ins)


def stamp(e, opt, k):
    if opt.stamp:
        e(f"""
        s_memtime s[76:77]
        s_waitcnt lgkmcnt(0)
        s_sub_u32 s76, s76, s64
        v_writelane_b32 v9, s76, {k}
        """)


def load_q(e, base, mod=""):
    for qb in range(4):
        for ks in range(4):
            e(f"global_load_dwordx4 {V(base + (qb * 4 + ks) * 4, 4)}, {V(vT + qb // 2)}, {S(sQ, 2)} offset:{(qb % 2) * 4096 - 4096 + 32 * ks}{mod}")


def q_addr(e):
    t = vT + 2
    e(f"""
    v_and_b32 {V(t)}, 3, v0
    v_lshlrev_b32 {V(t)}, 10, {V(t)}
    v_bfe_u32 {V(t + 1)}, v0, 2, 2
    v_lshl_add_u32 {V(t)}, {V(t + 1)}, 8, {V(t)}
    v_bfe_u32 {V(t + 1)}, v0, 4, 1
    v_lshl_add_u32 {V(t)}, {V(t + 1)}, 7, {V(t)}
    v_bfe_u32 {V(t + 1)}, v0, 5, 1
    v_lshl_add_u32 {V(t)}, {V(t + 1)}, 4, {V(t)}
    v_lshrrev_b32 {V(t + 1)}, 6, v0
    v_lshl_add_u32 {V(t)}, {V(t + 1)}, 14, {V(t)}
    v_add_u32 {V(vT)}, 0x1000, {V(t)}
    v_add_u32 {V(vT + 1)}, 0x3000, {V(t)}
    """)


def fix_q(e, base, scale):
    for f in range(16):
        b = base + 4 * f
        e.slot()
        if scale:
            for k in range(4):
                e(f"v_add_u32 {V(vT + 2 + k)}, {S(sC0)}, {V(b + k)}")
            for k in range(4):
                e(f"v_bitop3_b32 {V(vT + 6)}, {V(vT + 2 + k)}, {V(b + k)}, {V(vT + 6)} bitop3:0xbe")
            r = vT + 2
        else:
            r = b
        e(f"v_permlane32_swap_b32 {V(r)}, {V(r + 1)}")
        e(f"v_permlane32_swap_b32 {V(r + 2)}, {V(r + 3)}")
        for k, src in enumerate((0, 2, 1, 3)):
            e(f"v_accvgpr_write_b32 {A(Q0 + 4 * f + k)}, {V(r + src)}")


def prologue(opt):
    e = Lin()
    e(f"""
    s_cmp_ge_u32 s2, 256
    s_cbranch_scc1 L_end
    s_load_dwordx16 s[4:19], s[0:1], 0
    """)
    if opt.stamp:
        e("s_load_dwordx2 s[60:61], s[0:1], 72\ns_memrealtime s[62:63]\ns_memtime s[64:65]")
    if opt.diag:
        e("s_load_dwordx2 s[60:61], s[0:1], 64\ns_memrealtime s[62:63]\ns_memtime s[80:81]")
    e(f"""
    s_and_b32 {S(sH)}, s2, 7
    s_lshl_b32 {S(sH)}, {S(sH)}, 2
    s_lshr_b32 {S(sT0)}, s2, 6
    s_add_u32 {S(sH)}, {S(sH)}, {S(sT0)}
    s_bfe_u32 {S(sQB)}, s2, 0x30003
    v_lshrrev_b32 {V(vT)}, 5, v0
    v_and_b32 {V(vT + 1)}, 31, v0
    v_lshlrev_b32 {V(vG)}, 12, {V(vT)}
    v_lshl_add_u32 {V(vG)}, {V(vT + 1)}, 4, {V(vG)}
    v_lshlrev_b32 {V(vT + 2)}, 4, v0
    s_lshl_b32 {S(sT0)}, {S(sH)}, 13
    s_lshl_b32 {S(sT1)}, {S(sH)}, 12
    """)
    e.slot()
    e(f"""
    s_add_u32 {S(sKS)}, {S(sKS)}, {S(sT0)}
    s_addc_u32 {S(sKS + 1)}, {S(sKS + 1)}, 0
    s_add_u32 {S(sKZ)}, {S(sKZ)}, {S(sT0)}
    s_addc_u32 {S(sKZ + 1)}, {S(sKZ + 1)}, 0
    s_add_u32 {S(sVS)}, {S(sVS)}, {S(sT1)}
    s_addc_u32 {S(sVS + 1)}, {S(sVS + 1)}, 0
    s_add_u32 {S(sVZ)}, {S(sVZ)}, {S(sT1)}
    s_addc_u32 {S(sVZ + 1)}, {S(sVZ + 1)}, 0
    v_add_u32 {V(vT + 3)}, 0x1000, {V(vT + 2)}
    """)
    KSA, KZA, VSA, VZA = 16, 24, 32, 36
    e(f"""
    global_load_dwordx4 {V(KSA, 4)}, {V(vT + 2)}, {S(sKS, 2)}
    global_load_dwordx4 {V(KZA, 4)}, {V(vT + 2)}, {S(sKZ, 2)}
    global_load_dwordx4 {V(VSA, 4)}, {V(vT + 2)}, {S(sVS, 2)}
    global_load_dwordx4 {V(VZA, 4)}, {V(vT + 2)}, {S(sVZ, 2)}
    global_load_dwordx4 {V(KSA + 4, 4)}, {V(vT + 3)}, {S(sKS, 2)}
    global_load_dwordx4 {V(KZA + 4, 4)}, {V(vT + 3)}, {S(sKZ, 2)}
    s_lshl_b32 {S(sT0)}, {S(sH)}, 20
    s_add_u32 {S(sK)}, {S(sK)}, {S(sT0)}
    s_addc_u32 {S(sK + 1)}, {S(sK + 1)}, 0
    s_add_u32 {S(sV)}, {S(sV)}, {S(sT0)}
    s_addc_u32 {S(sV + 1)}, {S(sV + 1)}, 0
    """)
    K0 = P0
    for t in range(8):
        e(f"global_load_dwordx4 {V(K0 + 4 * t, 4)}, {V(vG)}, {S(sK, 2)} offset:{512 * t}{opt.kvmod}")
    e(f"""
    s_lshl_b32 {S(sT0)}, {S(sH)}, 3
    s_add_u32 {S(sT0)}, {S(sT0)}, {S(sQB)}
    s_lshl_b32 {S(sT0)}, {S(sT0)}, 16
    s_add_u32 {S(sQ)}, {S(sQ)}, {S(sT0)}
    s_addc_u32 {S(sQ + 1)}, {S(sQ + 1)}, 0
    s_add_u32 {S(sO)}, {S(sO)}, {S(sT0)}
    s_addc_u32 {S(sO + 1)}, {S(sO + 1)}, 0
    s_mov_b64 {S(sK0, 2)}, {S(sK, 2)}
    s_mov_b64 {S(sV0, 2)}, {S(sV, 2)}
    """)
    q_addr(e)
    load_q(e, S0, opt.qmod)
    for t in range(8):
        e(f"global_load_dwordx4 {V(VS0 + 4 * t, 4)}, {V(vG)}, {S(sV, 2)} offset:{512 * t}{opt.kvmod}")
    e(f"""
    s_add_u32 {S(sK)}, {S(sK)}, 0x8000
    s_addc_u32 {S(sK + 1)}, {S(sK + 1)}, 0
    s_add_u32 {S(sV)}, {S(sV)}, 0x8000
    s_addc_u32 {S(sV + 1)}, {S(sV + 1)}, 0
    """)
    for t in range(8):
        e(f"global_load_dwordx4 {V(KS0 + 4 * t, 4)}, {V(vG)}, {S(sK, 2)} offset:{512 * t}{opt.kvmod}")
    t = vT
    e(f"""
    v_lshrrev_b32 {V(t)}, 6, v0
    v_mov_b32 {V(vBAD)}, 0
    v_readfirstlane_b32 {S(sW)}, {V(t)}
    v_bfe_u32 {V(t)}, v0, 3, 1
    v_mul_u32_u24 {V(vKR)}, 4352, {V(t)}
    v_bfe_u32 {V(t)}, v0, 5, 1
    v_mul_u32_u24 {V(t)}, 1088, {V(t)}
    v_add_u32 {V(vKR)}, {V(vKR)}, {V(t)}
    v_and_b32 {V(t)}, 3, v0
    v_mul_u32_u24 {V(t)}, 272, {V(t)}
    v_add_u32 {V(vKR)}, {V(vKR)}, {V(t)}
    v_bfe_u32 {V(t)}, v0, 2, 1
    v_lshl_add_u32 {V(vKR)}, {V(t)}, 7, {V(vKR)}
    v_bfe_u32 {V(t)}, v0, 4, 1
    v_lshl_add_u32 {V(vKR)}, {V(t)}, 6, {V(vKR)}
    s_mul_i32 {S(sT0)}, {S(sW)}, 4352
    s_mov_b32 m0, {S(sT0)}
    v_and_b32 {V(t)}, 63, v0
    v_lshlrev_b32 {V(vVR)}, 4, {V(t)}
    v_add_u32 {V(vVR)}, {VB}, {V(vVR)}
    v_and_b32 {V(t)}, 1, v0
    v_mul_u32_u24 {V(vVW)}, 8256, {V(t)}
    v_lshrrev_b32 {V(t)}, 5, v0
    v_lshl_add_u32 {V(vVW)}, {V(t)}, 8, {V(vVW)}
    v_bfe_u32 {V(t)}, v0, 1, 4
    v_lshl_add_u32 {V(vVW)}, {V(t)}, 4, {V(vVW)}
    v_add_u32 {V(vVW)}, {VB}, {V(vVW)}
    v_and_b32 {V(t)}, 31, v0
    v_lshlrev_b32 {V(vKC)}, 4, {V(t)}
    v_add_u32 {V(vKC)}, {TB - 2 * REC}, {V(vKC)}
    v_bfe_u32 {V(t)}, v0, 4, 2
    v_lshlrev_b32 {V(vCT)}, 5, {V(t)}
    v_add_u32 {V(vCT)}, {TB - 2 * REC + 1024}, {V(vCT)}
    v_and_b32 {V(t + 1)}, 15, v0
    v_min_u32 {V(t + 1)}, 3, {V(t + 1)}
    v_lshlrev_b32 {V(t + 1)}, 4, {V(t + 1)}
    v_lshl_add_u32 {V(vXB)}, {V(t)}, 6, {V(t + 1)}
    v_add_u32 {V(vXB)}, {TB - 2 * REC + 1280}, {V(vXB)}
    s_mov_b32 {S(sPK)}, 0x47800000
    s_mov_b32 {S(sC0)}, {hex((SIG << 7) * 0x10001)}
    s_mov_b32 {S(sC0 + 1)}, {hex(f2u(CSC * 2.0 ** (149 - SIG)))}
    s_mov_b32 {S(sC0 + 2)}, {hex(f2u(-CSC * 2.0 ** (-SIG)))}
    s_mov_b32 {S(sC0 + 3)}, 0xffff0000
    s_mov_b32 {S(sCNT)}, 15
    """)
    e(f"""
    v_lshrrev_b32 {V(t + 3)}, 4, v0
    v_mul_u32_u24 {V(t)}, {REC}, {V(t + 3)}
    v_and_b32 {V(t + 3)}, 15, v0
    v_lshl_add_u32 {V(t)}, {V(t + 3)}, 5, {V(t)}
    v_add_u32 {V(t)}, {TB}, {V(t)}
    v_lshrrev_b32 {V(t + 3)}, 3, v0
    v_mul_u32_u24 {V(t + 1)}, {REC}, {V(t + 3)}
    v_and_b32 {V(t + 3)}, 7, v0
    v_lshl_add_u32 {V(t + 2)}, {V(t + 3)}, 6, {V(t + 1)}
    v_lshl_add_u32 {V(t + 1)}, {V(t + 3)}, 5, {V(t + 1)}
    v_add_u32 {V(t + 1)}, {TB + 1024}, {V(t + 1)}
    v_add_u32 {V(t + 2)}, {TB + 1280}, {V(t + 2)}
    """)
    for r in range(144):
        e(f"v_accvgpr_write_b32 {A(r)}, 0")
    TA, TBv, TM = VP0, VP0 + 8, CI0
    chk = t + 4
    e(f"v_mov_b32 {V(chk)}, 0")

    def kcoef(s):
        e.slot()
        for k in range(4):
            e(f"v_lshlrev_b32 {V(TM)}, 16, {V(KSA + 4 * s + k)}")
            e(f"v_and_b32 {V(TM + 1)}, {S(sC0 + 3)}, {V(KSA + 4 * s + k)}")
            e(f"v_lshlrev_b32 {V(TM + 2)}, 16, {V(KZA + 4 * s + k)}")
            e(f"v_and_b32 {V(TM + 3)}, {S(sC0 + 3)}, {V(KZA + 4 * s + k)}")
            for h in range(2):
                e(f"v_mul_f32 {V(TA + 2 * k + h)}, {S(sC0 + 1)}, {V(TM + h)}")
                e(f"v_mul_f32 {V(TM + h)}, {S(sC0 + 2)}, {V(TM + h)}")
                e(f"v_mul_f32 {V(TBv + 2 * k + h)}, {V(TM + h)}, {V(TM + 2 + h)}")
                e(f"v_fma_f32 {V(chk)}, {V(TA + 2 * k + h)}, 0, {V(chk)}")
                e(f"v_fma_f32 {V(chk)}, {V(TBv + 2 * k + h)}, 0, {V(chk)}")
        for h in range(2):
            e.add(lds(I(f"ds_write_b128 {V(t)}, {V(TA + 4 * h, 4)} offset:{s * 16 * REC + 16 * h}")))
            e.add(lds(I(f"ds_write_b128 {V(t)}, {V(TBv + 4 * h, 4)} offset:{s * 16 * REC + 512 + 16 * h}")))
    stamp(e, opt, 20)
    kcoef(0)
    stamp(e, opt, 21)
    e.slot()
    F, CT, RI, HI, LO = 40, 48, VP0, VP0 + 8, VP0 + 12
    for k in range(4):
        e(f"v_lshlrev_b32 {V(F + 2 * k)}, 16, {V(VSA + k)}")
        e(f"v_and_b32 {V(F + 2 * k + 1)}, {S(sC0 + 3)}, {V(VSA + k)}")
    for k in range(8):
        e(f"v_log_f32 {V(CT + k)}, {V(F + k)}")
        e(f"v_rcp_f32 {V(RI + k)}, {V(F + k)}")
    mn, mx = CI0, CI0 + 1
    e(f"""
    v_min3_u32 {V(mn)}, {V(F)}, {V(F + 1)}, {V(F + 2)}
    v_max3_u32 {V(mx)}, {V(F)}, {V(F + 1)}, {V(F + 2)}
    v_min3_u32 {V(mn)}, {V(F + 3)}, {V(F + 4)}, {V(mn)}
    v_max3_u32 {V(mx)}, {V(F + 3)}, {V(F + 4)}, {V(mx)}
    v_min3_u32 {V(mn)}, {V(F + 5)}, {V(F + 6)}, {V(mn)}
    v_max3_u32 {V(mx)}, {V(F + 5)}, {V(F + 6)}, {V(mx)}
    v_min_u32 {V(mn)}, {V(F + 7)}, {V(mn)}
    v_max_u32 {V(mx)}, {V(F + 7)}, {V(mx)}
    v_cmp_gt_u32 vcc, {hex(f2u(2.0 ** -16))}, {V(mn)}
    v_cndmask_b32 {V(vBAD)}, {V(vBAD)}, 1, vcc
    v_cmp_lt_u32 vcc, {hex(f2u(2.0 ** 8))}, {V(mx)}
    v_cndmask_b32 {V(vBAD)}, {V(vBAD)}, 1, vcc
    """)
    for k in range(8):
        e(f"v_add_f32 {V(CT + k)}, {hex(f2u(float(POFF)))}, {V(CT + k)}")
    for k in range(4):
        e(f"v_cvt_pk_bf16_f32 {V(HI + k)}, {V(RI + 2 * k)}, {V(RI + 2 * k + 1)}")
    for k in range(4):
        e(f"v_lshlrev_b32 {V(F)}, 16, {V(HI + k)}")
        e(f"v_and_b32 {V(F + 1)}, {S(sC0 + 3)}, {V(HI + k)}")
        e(f"v_sub_f32 {V(F)}, {V(RI + 2 * k)}, {V(F)}")
        e(f"v_sub_f32 {V(F + 1)}, {V(RI + 2 * k + 1)}, {V(F + 1)}")
        e(f"v_cvt_pk_bf16_f32 {V(LO + k)}, {V(F)}, {V(F + 1)}")
    for k in range(4):
        e(f"v_mov_b32 {V(F + k)}, 0")
    e.add(lds(I(f"ds_write_b128 {V(t + 1)}, {V(CT, 4)}")))
    e.add(lds(I(f"ds_write_b128 {V(t + 1)}, {V(CT + 4, 4)} offset:16")))
    e.add(lds(I(f"ds_write_b128 {V(t + 2)}, {V(HI, 4)}")))
    e.add(lds(I(f"ds_write_b128 {V(t + 2)}, {V(LO, 4)} offset:16")))
    e.add(lds(I(f"ds_write_b128 {V(t + 2)}, {V(VZA, 4)} offset:32")))
    e.add(lds(I(f"ds_write_b128 {V(t + 2)}, {V(F, 4)} offset:48")))
    kcoef(1)
    e(f"""
    v_cmp_u_f32 vcc, {V(chk)}, {V(chk)}
    v_cndmask_b32 {V(vBAD)}, {V(vBAD)}, 1, vcc
    """)
    e.slot()
    stamp(e, opt, 22)
    e("s_barrier")
    stamp(e, opt, 23)
    e(f"ds_read_b128 {V(KC0, 4)}, {V(vKC)} offset:{2 * REC}")
    e(f"ds_read_b128 {V(KC0 + 4, 4)}, {V(vKC)} offset:{2 * REC + 512}")
    e(f"ds_read_b128 {V(CI0, 4)}, {V(vCT)} offset:{2 * REC}")
    for tk in range(8):
        e.slot()
        b = K0 + 4 * tk
        for p in range(2):
            e(f"v_pk_fma_f32 {V(b + 2 * p, 2)}, {V(b + 2 * p, 2)}, {V(KC0 + 2 * p, 2)}, {V(KC0 + 4 + 2 * p, 2)}")
        for p in range(2):
            e(f"v_cvt_pk_bf16_f32 {V(b + 2 * p)}, {V(b + 2 * p)}, {V(b + 2 * p + 1)}")
        for p in range(2):
            e.add(k_write(0, tk, p, b + 2 * p))
    e.slot()
    stamp(e, opt, 24)
    e("s_barrier")
    stamp(e, opt, 25)
    for ks in range(4):
        e.add(k_read(0, 0, ks, A(KF(0, ks), 4)))
    e(f"v_mov_b32 {V(vT + 6)}, 0")
    fix_q(e, S0, True)
    e(f"""
    v_and_b32 {V(vT + 6)}, 0x80008000, {V(vT + 6)}
    v_or_b32 {V(vBAD)}, {V(vBAD)}, {V(vT + 6)}
    """)
    if opt.stamp:
        e("s_memtime s[66:67]\nv_and_b32 v54, 63, v0")
    if opt.diag:
        e("s_memrealtime s[66:67]\ns_memtime s[82:83]")
    e.slot()
    return e.c


def out_addr(e):
    e(f"""
    v_and_b32 {V(vT + 2)}, 63, v0
    v_lshlrev_b32 {V(vT + 2)}, 4, {V(vT + 2)}
    v_lshrrev_b32 {V(vT + 3)}, 6, v0
    v_lshl_add_u32 {V(vT + 2)}, {V(vT + 3)}, 14, {V(vT + 2)}
    v_add_u32 {V(vT)}, 0x1000, {V(vT + 2)}
    v_add_u32 {V(vT + 1)}, 0x3000, {V(vT + 2)}
    """)


def epilogue(opt):
    e = Lin()
    if opt.stamp:
        e("s_memtime s[68:69]")
    if opt.diag:
        e("s_memrealtime s[68:69]\ns_memtime s[84:85]")
    out_addr(e)
    mn, mx, chk = vT + 2, vT + 3, vT + 4
    X, L, CA, CB = 16, 20, 24, 28
    e(f"""
    v_mov_b32 {V(mn)}, -1
    v_mov_b32 {V(mx)}, 0
    v_mov_b32 {V(chk)}, 0
    s_movk_i32 {S(sC0)}, 133
    """)
    dpp = "row_mask:0xf bank_mask:0xf"
    for qb in range(4):
        for r in range(4):
            e(f"v_accvgpr_read_b32 {V(X + r)}, {A(X0 + 4 * qb + r)}")
        for r in range(4):
            e(f"v_mov_b32_dpp {V(L + r)}, {V(X + r)} row_newbcast:0 {dpp}")
        for r in range(4):
            e(f"v_add_f32_dpp {V(L + r)}, {V(X + r)}, {V(L + r)} row_newbcast:1 {dpp}")
        for r in range(4):
            e(f"v_mov_b32_dpp {V(CB + r)}, {V(X + r)} row_newbcast:2 {dpp}")
        for r in range(4):
            e(f"v_rcp_f32 {V(CA + r)}, {V(L + r)}")
        e(f"""
        v_min3_u32 {V(mn)}, {V(L)}, {V(L + 1)}, {V(mn)}
        v_max3_u32 {V(mx)}, {V(L)}, {V(L + 1)}, {V(mx)}
        v_min3_u32 {V(mn)}, {V(L + 2)}, {V(L + 3)}, {V(mn)}
        v_max3_u32 {V(mx)}, {V(L + 2)}, {V(L + 3)}, {V(mx)}
        """)
        for r in range(4):
            e(f"v_mul_f32 {V(CB + r)}, {V(CB + r)}, {V(CA + r)}")
        for r in range(4):
            e(f"v_ldexp_f32 {V(CA + r)}, {V(CA + r)}, {S(sC0)}")
        for r in range(4):
            e(f"v_fma_f32 {V(chk)}, {V(CB + r)}, 0, {V(chk)}")
        for r in range(4):
            T = S0 + 8 * ((qb * 4 + r) % 8)
            D = P0 + 4 * ((qb * 4 + r) % 8)
            for db in range(8):
                e(f"v_accvgpr_read_b32 {V(T + db)}, {A(Oreg(db, qb) + r)}")
            for db in range(8):
                e(f"v_fma_f32 {V(T + db)}, {V(T + db)}, {V(CA + r)}, -{V(CB + r)}")
            if qb == 0 and r == 0:
                for db in range(8):
                    e(f"v_fma_f32 {V(chk)}, {V(T + db)}, 0, {V(chk)}")
            for k in range(4):
                e(f"v_cvt_pk_bf16_f32 {V(D + k)}, {V(T + 2 * k)}, {V(T + 2 * k + 1)}")
            e(f"global_store_dwordx4 {V(vT + qb // 2)}, {V(D, 4)}, {S(sO, 2)} offset:{(qb % 2) * 4096 - 4096 + 1024 * r}{opt.omod}")
    e(f"""
    v_cmp_gt_u32 vcc, {hex(f2u(2.0 ** (POFF - 10)))}, {V(mn)}
    v_cndmask_b32 {V(vBAD)}, {V(vBAD)}, 1, vcc
    v_cmp_lt_u32 vcc, {hex(f2u(2.0 ** (POFF + 40)))}, {V(mx)}
    v_cndmask_b32 {V(vBAD)}, {V(vBAD)}, 1, vcc
    v_cmp_u_f32 vcc, {V(chk)}, {V(chk)}
    v_cndmask_b32 {V(vBAD)}, {V(vBAD)}, 1, vcc
    """)
    if opt.force_slow:
        e(f"v_mov_b32 {V(vBAD)}, 1")
    e(f"""
    v_cmp_ne_u32 vcc, 0, {V(vBAD)}
    s_or_b32 {S(sT0)}, vcc_lo, vcc_hi
    s_lshl_b32 {S(sT1)}, {S(sW)}, 2
    s_add_u32 {S(sT1)}, {S(sT1)}, {FLAG}
    v_mov_b32 {V(X)}, {S(sT0)}
    v_mov_b32 {V(X + 1)}, {S(sT1)}
    v_mov_b32 {V(X + 2)}, {FLAG}
    """)
    e.c[-6].rd = ['vcc']
    e.add(lds(I(f"ds_write_b32 {V(X + 1)}, {V(X)}")))
    e.slot()
    e("s_barrier")
    e(f"ds_read_b128 {V(L, 4)}, {V(X + 2)}")
    e.slot()
    e(f"""
    v_or_b32 {V(L)}, {V(L)}, {V(L + 1)}
    v_or3_b32 {V(L)}, {V(L)}, {V(L + 2)}, {V(L + 3)}
    v_readfirstlane_b32 {S(sT0)}, {V(L)}
    """)
    if opt.stamp:
        e(f"""
        s_waitcnt vmcnt(0)
        s_memtime s[70:71]
        s_memrealtime s[72:73]
        s_waitcnt lgkmcnt(0)
        s_sub_u32 s66, s66, s64
        s_sub_u32 s68, s68, s64
        s_sub_u32 s70, s70, s64
        v_mov_b32 v16, s66
        v_mov_b32 v17, s68
        v_mov_b32 v18, s70
        v_mov_b32 v19, s62
        v_mov_b32 v20, s72
        v_mov_b32 v21, 0
        v_mov_b32 v22, 0
        v_mov_b32 v23, 0
        s_lshl_b32 s74, s2, 2
        s_add_u32 s74, s74, {S(sW)}
        s_lshl_b32 s74, s74, 5
        v_mov_b32 v24, s74
        global_store_dwordx4 v24, v[16:19], s[60:61]
        global_store_dwordx4 v24, v[20:23], s[60:61] offset:16
        v_and_b32 v25, 63, v0
        v_lshlrev_b32 v25, 2, v25
        s_lshl_b32 s74, s74, 3
        s_add_u32 s74, s74, 0x10000
        v_add_u32 v25, s74, v25
        global_store_dword v25, v9, s[60:61]
        """)
    if opt.diag:
        e("""
        s_waitcnt vmcnt(0)
        s_memrealtime s[70:71]
        s_memtime s[86:87]
        s_waitcnt lgkmcnt(0)
        s_sub_u32 s72, s66, s62
        s_sub_u32 s73, s68, s66
        s_sub_u32 s74, s70, s68
        s_sub_u32 s76, s82, s80
        s_sub_u32 s77, s84, s82
        s_sub_u32 s78, s86, s84
        """)
        if opt.diag == 'dbg':
            e(f"""
            s_and_b32 s75, s2, 0x7f
            s_or_b32 s75, s75, {S(sW)}
            s_cmp_lg_u32 s75, 0
            s_cbranch_scc1 L_nodbg
            s_lshr_b32 s75, s2, 2
            v_mov_b32 v16, s72
            v_mov_b32 v17, s73
            v_mov_b32 v18, s74
            v_mov_b32 v19, s62
            v_mov_b32 v20, s76
            v_mov_b32 v21, s77
            v_mov_b32 v22, s78
            v_mov_b32 v23, s70
            v_mov_b32 v24, s75
            global_store_dwordx4 v24, v[16:19], s[60:61]
            global_store_dwordx4 v24, v[20:23], s[60:61] offset:16
            L_nodbg:
            """)
        elif opt.diag != 'none':
            r = {'P': 72, 'M': 73, 'E': 74}[opt.diag]
            e(f"""
            s_lshl_b32 s75, s{r}, 2
            s_min_u32 s75, s75, 100000
            L_spin:
            s_memrealtime s[88:89]
            s_waitcnt lgkmcnt(0)
            s_sub_u32 s88, s88, s70
            s_cmp_lt_u32 s88, s75
            s_cbranch_scc1 L_spin
            """)
    e(f"""
    s_cmp_eq_u32 {S(sT0)}, 0
    s_cbranch_scc1 L_end
    """)
    return e.c


def careful(opt):
    blocks = []
    sPASS, sTILE, sC, sM = 34, 35, 36, 37
    sKt, sVt = 38, 40
    M0 = 44
    ONES = XB0
    aKC, aVC = 48, 49
    e = Lin()
    e("L_careful:")
    e("s_waitcnt vmcnt(0) lgkmcnt(0)")
    q_addr(e)
    load_q(e, S0)
    e(f"""
    s_mov_b32 {S(sPASS)}, 0
    s_mov_b32 {S(sC)}, {hex(f2u(CSC))}
    s_mov_b32 {S(sM)}, 0xffff0000
    s_waitcnt vmcnt(0)
    """)
    fix_q(e, S0, False)
    for r in range(144):
        e(f"v_accvgpr_write_b32 {A(r)}, 0")
    for k in range(4):
        e(f"v_mov_b32 {V(M0 + k)}, 0xff800000")
        e(f"v_mov_b32 {V(ONES + k)}, 0x3f803f80")
    e("s_nop 7")
    blocks.append(e.c)

    e = Lin()
    e("L_c_pass:")
    e(f"""
    s_mov_b32 {S(sTILE)}, 0
    s_mov_b64 {S(sKt, 2)}, {S(sK0, 2)}
    s_mov_b64 {S(sVt, 2)}, {S(sV0, 2)}
    v_and_b32 {V(aKC)}, 31, v0
    v_lshlrev_b32 {V(aKC)}, 3, {V(aKC)}
    v_lshrrev_b32 {V(aVC)}, 5, v0
    v_lshlrev_b32 {V(aVC)}, 4, {V(aVC)}
    """)
    blocks.append(e.c)

    def rnd(e, a, b):
        e(f"v_cvt_pk_bf16_f32 {V(b)}, {V(a)}, {V(b)}")
        e(f"v_lshlrev_b32 {V(a)}, 16, {V(b)}")
        e(f"v_and_b32 {V(b)}, {S(sM)}, {V(b)}")

    e = Lin()
    e("L_c_tile:")
    KSr, KZr, VSr, VZr = 16, 18, 20, 24
    U = 28
    for t in range(8):
        e(f"global_load_dwordx4 {V(KS0 + 4 * t, 4)}, {V(vG)}, {S(sKt, 2)} offset:{512 * t}")
        e(f"global_load_dwordx4 {V(VS0 + 4 * t, 4)}, {V(vG)}, {S(sVt, 2)} offset:{512 * t}")
    e(f"""
    global_load_dwordx2 {V(KSr, 2)}, {V(aKC)}, {S(sKS, 2)}
    global_load_dwordx2 {V(KZr, 2)}, {V(aKC)}, {S(sKZ, 2)}
    global_load_dwordx4 {V(VSr, 4)}, {V(aVC)}, {S(sVS, 2)}
    global_load_dwordx4 {V(VZr, 4)}, {V(aVC)}, {S(sVZ, 2)}
    s_add_u32 {S(sKt)}, {S(sKt)}, 0x8000
    s_addc_u32 {S(sKt + 1)}, {S(sKt + 1)}, 0
    s_add_u32 {S(sVt)}, {S(sVt)}, 0x8000
    s_addc_u32 {S(sVt + 1)}, {S(sVt + 1)}, 0
    v_add_u32 {V(aKC)}, 256, {V(aKC)}
    v_add_u32 {V(aVC)}, 128, {V(aVC)}
    s_waitcnt vmcnt(0)
    """)
    for k in range(2):
        e(f"v_lshlrev_b32 {V(U + 2 * k)}, 16, {V(KSr + k)}")
        e(f"v_and_b32 {V(U + 2 * k + 1)}, {S(sM)}, {V(KSr + k)}")
        e(f"v_lshlrev_b32 {V(U + 4 + 2 * k)}, 16, {V(KZr + k)}")
        e(f"v_and_b32 {V(U + 4 + 2 * k + 1)}, {S(sM)}, {V(KZr + k)}")
    for t in range(8):
        for p in range(2):
            a = KS0 + 4 * t + 2 * p
            e(f"v_cvt_f32_i32 {V(a)}, {V(a)}")
            e(f"v_cvt_f32_i32 {V(a + 1)}, {V(a + 1)}")
            rnd(e, a, a + 1)
            e(f"v_sub_f32 {V(a)}, {V(a)}, {V(U + 4 + 2 * p)}")
            e(f"v_sub_f32 {V(a + 1)}, {V(a + 1)}, {V(U + 4 + 2 * p + 1)}")
            rnd(e, a, a + 1)
            e(f"v_mul_f32 {V(a)}, {V(a)}, {V(U + 2 * p)}")
            e(f"v_mul_f32 {V(a + 1)}, {V(a + 1)}, {V(U + 2 * p + 1)}")
            e(f"v_cvt_pk_bf16_f32 {V(a)}, {V(a)}, {V(a + 1)}")
    for k in range(4):
        e(f"v_lshlrev_b32 {V(U + 2 * k)}, 16, {V(VSr + k)}")
        e(f"v_and_b32 {V(U + 2 * k + 1)}, {S(sM)}, {V(VSr + k)}")
        e(f"v_lshlrev_b32 {V(U + 8 + 2 * k)}, 16, {V(VZr + k)}")
        e(f"v_and_b32 {V(U + 8 + 2 * k + 1)}, {S(sM)}, {V(VZr + k)}")
    for p in range(4):
        for j in range(4):
            a, b = VS0 + 8 * p + j, VS0 + 8 * p + 4 + j
            e(f"v_cvt_f32_i32 {V(a)}, {V(a)}")
            e(f"v_cvt_f32_i32 {V(b)}, {V(b)}")
            rnd(e, a, b)
            e(f"v_sub_f32 {V(a)}, {V(a)}, {V(U + 8 + 2 * p)}")
            e(f"v_sub_f32 {V(b)}, {V(b)}, {V(U + 8 + 2 * p + 1)}")
            rnd(e, a, b)
            e(f"v_mul_f32 {V(a)}, {V(a)}, {V(U + 2 * p)}")
            e(f"v_mul_f32 {V(b)}, {V(b)}, {V(U + 2 * p + 1)}")
            e(f"v_cvt_pk_bf16_f32 {V(VP0 + 4 * j + p)}, {V(a)}, {V(b)}")
    e("s_waitcnt lgkmcnt(0)\ns_barrier")
    for t in range(8):
        for p in range(2):
            e.add(k_write(0, t, p, KS0 + 4 * t + 2 * p))
    for j in range(4):
        e.add(v_write(0, j, VP0 + 4 * j))
    e("s_waitcnt lgkmcnt(0)\ns_barrier")
    for tb in range(4):
        for ks in range(4):
            e.add(k_read(0, tb, ks, A(KF(0, ks), 4)))
        e("s_waitcnt lgkmcnt(0)")
        for qb in range(4):
            for ks in range(4):
                c = "0" if ks == 0 else V(Sreg(tb, qb), 4)
                e(f"{MF} {V(Sreg(tb, qb), 4)}, {A(KF(0, ks), 4)}, {A(Qreg(qb, ks), 4)}, {c}")
        e("s_nop 7")
    e(f"""
    s_nop 7
    s_cmp_lg_u32 {S(sPASS)}, 0
    s_cbranch_scc1 L_c_acc
    """)
    for tb in range(4):
        for qb in range(4):
            s = Sreg(tb, qb)
            e(f"v_max3_f32 {V(M0 + qb)}, {V(s)}, {V(s + 1)}, {V(M0 + qb)}")
            e(f"v_max3_f32 {V(M0 + qb)}, {V(s + 2)}, {V(s + 3)}, {V(M0 + qb)}")
    e("s_branch L_c_next")
    blocks.append(e.c)

    e = Lin()
    e("L_c_acc:")
    for tb in range(4):
        for qb in range(4):
            s = Sreg(tb, qb)
            for r in range(4):
                e(f"v_sub_f32 {V(s + r)}, {V(s + r)}, {V(M0 + qb)}")
            for r in range(4):
                e(f"v_mul_f32 {V(s + r)}, {S(sC)}, {V(s + r)}")
            for r in range(4):
                e(f"v_exp_f32 {V(s + r)}, {V(s + r)}")
            for h in range(2):
                e(f"v_cvt_pk_bf16_f32 {V(Preg(qb, tb // 2) + 2 * (tb % 2) + h)}, {V(s + 2 * h)}, {V(s + 2 * h + 1)}")
    for blk in range(9):
        if blk < 8:
            for kk in range(2):
                e.add(v_read(0, blk, kk, A(VF(0, kk), 4)))
            e("s_waitcnt lgkmcnt(0)")
        for qb in range(4):
            for kk in range(2):
                d = A(Oreg(blk, qb), 4) if blk < 8 else A(X0 + 4 * qb, 4)
                b = A(VF(0, kk), 4) if blk < 8 else V(ONES, 4)
                e(f"{MF} {d}, {V(Preg(qb, kk), 4)}, {b}, {d}")
        e("s_nop 7")
    blocks.append(e.c)

    e = Lin()
    e("L_c_next:")
    e(f"""
    s_nop 7
    s_add_u32 {S(sTILE)}, {S(sTILE)}, 1
    s_cmp_lt_u32 {S(sTILE)}, 32
    s_cbranch_scc1 L_c_tile
    s_cmp_lg_u32 {S(sPASS)}, 0
    s_cbranch_scc1 L_c_out
    """)
    for qb in range(4):
        for sw in ("v_permlane32_swap_b32", "v_permlane16_swap_b32"):
            e(f"v_mov_b32 {V(16)}, {V(M0 + qb)}")
            e(f"{sw} {V(M0 + qb)}, {V(16)}")
            e(f"v_max_f32 {V(M0 + qb)}, {V(M0 + qb)}, {V(16)}")
    e(f"""
    s_mov_b32 {S(sPASS)}, 1
    s_branch L_c_pass
    """)
    blocks.append(e.c)

    e = Lin()
    e("L_c_out:")
    out_addr(e)
    CA = 24
    for qb in range(4):
        for r in range(4):
            e(f"v_accvgpr_read_b32 {V(CA + r)}, {A(X0 + 4 * qb + r)}")
        for r in range(4):
            e(f"v_rcp_f32 {V(CA + r)}, {V(CA + r)}")
        for r in range(4):
            T = S0 + 8 * ((qb * 4 + r) % 8)
            D = P0 + 4 * ((qb * 4 + r) % 8)
            for db in range(8):
                e(f"v_accvgpr_read_b32 {V(T + db)}, {A(Oreg(db, qb) + r)}")
            for db in range(8):
                e(f"v_mul_f32 {V(T + db)}, {V(T + db)}, {V(CA + r)}")
            for k in range(4):
                e(f"v_cvt_pk_bf16_f32 {V(D + k)}, {V(T + 2 * k)}, {V(T + 2 * k + 1)}")
            e(f"global_store_dwordx4 {V(vT + qb // 2)}, {V(D, 4)}, {S(sO, 2)} offset:{(qb % 2) * 4096 - 4096 + 1024 * r}")
    blocks.append(e.c)
    out = []
    for b in blocks:
        b = [x for x in b if x.kind != 'slot']
        fix_hazards_linear(b)
        place_waits(b, fix=False)
        out += b
    return out


def build(opt):
    tab = TabState(-2)
    pro = prologue(opt)
    itm1 = Iter(-1, tab, opt)
    base0 = dict(tab.base)
    it0 = Iter(0, tab, opt, loop=True)
    it1 = Iter(1, tab, opt, loop=True)
    assert all(tab.base[r] == base0[r] + 2 for r in base0)
    tab.base = {r: v + 28 for r, v in tab.base.items()}
    it30 = Iter(30, tab, opt)
    it31 = Iter(31, tab, opt)
    epi = epilogue(opt)
    head, tail = I("L_loop:"), I("s_cbranch_scc1 L_loop")
    align = I(".p2align 3")

    lst = []
    if opt.stamp:
        lst = [I("s_memtime s[76:77]"), I("s_waitcnt lgkmcnt(0)"), I("s_sub_u32 s76, s76, s64"), I("v_mov_b32 v55, s76"), I(f"v_cmp_eq_u32 vcc, {S(sCNT)}, v54"), I("s_nop 1"), I("v_cndmask_b32 v9, v9, v55, vcc")]
    pre30 = Lin(); stamp(pre30, opt, 0)
    pre31 = Lin(); stamp(pre31, opt, 26)

    def assemble():
        front = pro + itm1.code()
        body = lst + it0.code() + it1.code()
        back = pre30.c + it30.code() + pre31.c + it31.code() + epi
        return front, body, back

    def trace(front, body, back, trips=3):
        return front + (body + [tail]) * trips + back
    front, body, back = assemble()
    for _ in range(6):
        if place_waits(trace(front, body, back)) == 0:
            break
    for it in (itm1, it0, it1, it30, it31):
        it.place_salu()
    front, body, back = assemble()
    fix_hazards_linear(front)
    fix_hazards_linear(back)
    for trips in (1, 2, 3):
        tr = trace(front, body, back, trips)
        place_waits(tr, fix=False)
        bad = check_hazards(tr)
        for b in bad:
            print("HAZARD", b, file=sys.stderr)
        assert not bad
    print("issue-cycle estimate: front", issue_cycles(front), "body/2", issue_cycles(body + body) / 4, "back", issue_cycles(back), file=sys.stderr)
    code = front + [align, head] + body + [tail] + back + careful(opt) + [I("L_end:")]
    return code


HEADER = open(__file__.rsplit('/', 1)[0] + '/header.txt').read() if '/' in __file__ else open('header.txt').read()


def main():
    ap = argparse.ArgumentParser()
    ap.add_argument('-o', default='cdna_kernels/' + NAME + '.s')
    ap.add_argument('--stamp', action='store_true')
    ap.add_argument('--force-slow', action='store_true')
    ap.add_argument('--diag', default='')
    ap.add_argument('--kvmod', default='')
    ap.add_argument('--qmod', default='')
    ap.add_argument('--omod', default='')
    opt = ap.parse_args()
    for k in ('kvmod', 'qmod', 'omod'):
        v = getattr(opt, k)
        setattr(opt, k, ' ' + v.replace(',', ' ') if v else '')
    code = build(opt)
    s = HEADER.replace('@LDS@', str(LDS_BYTES))
    s += f""".amdgcn_target "amdgcn-amd-amdhsa--gfx950"
.text
.globl {NAME}_kernel
.p2align 8
.type {NAME}_kernel,@function
{NAME}_kernel:
"""
    s += render(code)
    s += f"""    s_endpgm
.section .rodata,"a"
.p2align 6
.amdhsa_kernel {NAME}_kernel
  .amdhsa_next_free_vgpr 512
  .amdhsa_next_free_sgpr 102
  .amdhsa_accum_offset 256
  .amdhsa_group_segment_fixed_size 0
  .amdhsa_kernarg_size 80
  .amdhsa_user_sgpr_count 2
  .amdhsa_user_sgpr_kernarg_segment_ptr 1
  .amdhsa_system_sgpr_workgroup_id_x 1
  .amdhsa_float_denorm_mode_32 3
.end_amdhsa_kernel
"""
    open(opt.o, 'w').write(s)


if __name__ == '__main__':
    main()
```

```python
import re


def regs(spec):
    spec = spec.strip()
    neg = spec.startswith('-')
    if neg:
        spec = spec[1:]
    if spec.startswith('|') and spec.endswith('|'):
        spec = spec[1:-1]
    m = re.fullmatch(r'([vas])\[(\d+):(\d+)\]', spec)
    if m:
        return [m.group(1) + str(i) for i in range(int(m.group(2)), int(m.group(3)) + 1)]
    m = re.fullmatch(r'([vas])(\d+)', spec)
    if m:
        return [spec]
    if spec in ('vcc', 'm0', 'exec', 'scc'):
        return [spec]
    return []


def R(kind, base, n=1):
    return f"{kind}{base}" if n == 1 else f"{kind}[{base}:{base + n - 1}]"


def V(b, n=1): return R('v', b, n)
def A(b, n=1): return R('a', b, n)
def S(b, n=1): return R('s', b, n)


TRANS = ('v_exp_f32', 'v_log_f32', 'v_rcp_f32', 'v_rsq_f32', 'v_sqrt_f32')


class I:
    def __init__(self, text, tag=None):
        self.text = text
        self.tag = tag
        self.pre_barrier = False
        self.parse()

    def parse(self):
        t = self.text.split(';')[0].strip()
        if t.endswith(':') or t.startswith('.') or t == '':
            self.op = 'label'
            self.kind = 'label'
            self.rd, self.wr = [], []
            return
        sp = t.split(None, 1)
        op = sp[0]
        rest = sp[1] if len(sp) > 1 else ''
        ops, depth, cur = [], 0, ''
        for ch in rest:
            if ch in '[(':
                depth += 1
            if ch in '])':
                depth -= 1
            if ch == ',' and depth == 0:
                ops.append(cur.strip())
                cur = ''
            else:
                cur += ch
        if cur.strip():
            ops.append(cur.strip())
        mods = ''
        if ops:
            l = ops[-1].split(None, 1)
            ops[-1] = l[0]
            mods = l[1] if len(l) > 1 else ''
        self.op, self.ops, self.mods = op, ops, mods
        rd, wr = [], []
        kind = None
        self.srcc = []
        if op.startswith('v_mfma'):
            kind = 'mfma'
            wr = regs(ops[0])
            self.srca, self.srcb, self.srcc = regs(ops[1]), regs(ops[2]), regs(ops[3])
            rd = self.srca + self.srcb + self.srcc
            self.passes = 4 if '16x16x32' in op else 8
        elif op.startswith('v_'):
            kind = 'valu'
            if op.startswith('v_cmp'):
                wr = regs(ops[0])
                rd = sum((regs(o) for o in ops[1:]), [])
            elif op.startswith('v_permlane') or op.startswith('v_swap'):
                wr = regs(ops[0]) + regs(ops[1])
                rd = list(wr)
            else:
                wr = regs(ops[0])
                rd = sum((regs(o) for o in ops[1:]), [])
                if op.startswith('v_fmac') or op.startswith('v_dot2c') or '_dpp' in op:
                    rd += wr
            if op == 'v_nop':
                rd, wr = [], []
        elif op.startswith('ds_read') or op.startswith('ds_bpermute'):
            kind = 'ds'
            wr = regs(ops[0])
            rd = sum((regs(o) for o in ops[1:]), [])
        elif op.startswith('ds_write_addtid'):
            kind = 'ds'
            rd = regs(ops[0]) + ['m0']
        elif op.startswith('ds_'):
            kind = 'ds'
            rd = sum((regs(o) for o in ops), [])
        elif op.startswith('global_load_lds'):
            kind = 'vmem'
            rd = sum((regs(o) for o in ops), []) + ['m0']
        elif op.startswith('global_load') or op.startswith('buffer_load'):
            kind = 'vmem'
            wr = regs(ops[0])
            rd = sum((regs(o) for o in ops[1:]), [])
        elif op.startswith('global_store') or op.startswith('buffer_store') or op.startswith('global_atomic'):
            kind = 'vmem'
            rd = sum((regs(o) for o in ops), [])
        elif op.startswith('s_load') or op in ('s_memtime', 's_memrealtime'):
            kind = 'smem'
            wr = regs(ops[0])
            rd = sum((regs(o) for o in ops[1:]), [])
        elif op == 's_waitcnt':
            kind = 'wait'
        elif op == 's_nop':
            kind = 'nop'
        elif op == 's_barrier':
            kind = 'barrier'
        elif op.startswith('s_cbranch') or op == 's_branch' or op == 's_endpgm':
            kind = 'branch'
            if 'scc' in op:
                rd = ['scc']
            if 'vcc' in op:
                rd = ['vcc']
        elif op.startswith('s_cmp'):
            kind = 'salu'
            wr = ['scc']
            rd = sum((regs(o) for o in ops), [])
        elif op.startswith('s_'):
            kind = 'salu'
            if op in ('s_setprio', 's_sleep') or op.startswith('s_setreg'):
                pass
            else:
                wr = regs(ops[0])
                rd = sum((regs(o) for o in ops[1:]), [])
                if op.startswith(('s_add', 's_sub', 's_and', 's_or', 's_xor', 's_lshl', 's_lshr', 's_min', 's_max', 's_bfe')):
                    wr = wr + ['scc']
                if op.startswith(('s_addc', 's_subb', 's_cselect')):
                    rd = rd + ['scc']
        else:
            raise Exception("unknown op " + t)
        self.kind, self.rd, self.wr = kind, rd, wr

    def states(self):
        if self.kind == 'label':
            return 0
        if self.kind == 'nop':
            return int(self.ops[0]) + 1
        return 1

    def __repr__(self):
        return self.text


class Slot(I):
    def __init__(self):
        self.text = ''
        self.tag = 'slot'
        self.op = 'slot'
        self.kind = 'slot'
        self.rd, self.wr = [], []
        self.vm = None
        self.lgkm = None
        self.pre_barrier = False

    def active(self):
        return self.vm is not None or self.lgkm is not None

    def states(self):
        return 1 if self.active() else 0

    def render(self):
        p = []
        if self.vm is not None:
            p.append(f"vmcnt({self.vm})")
        if self.lgkm is not None:
            p.append(f"lgkmcnt({self.lgkm})")
        return "s_waitcnt " + " ".join(p)


def parse_wait(ins):
    if ins.kind == 'slot':
        return ins.vm, ins.lgkm
    vm = re.search(r'vmcnt\((\d+)\)', ins.text)
    lg = re.search(r'lgkmcnt\((\d+)\)', ins.text)
    return (int(vm.group(1)) if vm else None), (int(lg.group(1)) if lg else None)


def place_waits(trace, fix=True):
    changes = 0
    cnt = {'vm': 0, 'lg': 0}
    done = {'vm': 0, 'lg': 0}
    pend = {}
    prebar = -1
    smem_pending = False
    slots = []
    for pos, ins in enumerate(trace):
        if ins.kind in ('slot', 'wait'):
            if ins.kind == 'slot':
                slots.append((ins, cnt['vm'], cnt['lg']))
            vm, lg = parse_wait(ins)
            if vm is not None:
                done['vm'] = max(done['vm'], cnt['vm'] - vm)
            if lg is not None:
                if smem_pending and lg != 0:
                    pass
                else:
                    done['lg'] = max(done['lg'], cnt['lg'] - lg)
                    if lg == 0:
                        smem_pending = False
            continue
        need = []
        for r in ins.rd + ins.wr:
            if r in pend:
                need.append(pend[r])
        if ins.kind == 'barrier' and prebar >= 0:
            need.append(('lg', prebar, False))
        for cls, idx, is_smem in need:
            if idx < done[cls]:
                continue
            if not fix:
                raise Exception(f"uncovered dependency at trace pos {pos}: {ins.text} ({cls} {idx})")
            if not slots:
                raise Exception("no slot for " + ins.text)
            k = len(slots) - 1
            while k >= 0 and getattr(slots[k][0], 'frozen', False):
                k -= 1
            if k < 0:
                raise Exception("no open slot for " + ins.text)
            sl, cvm, clg = slots[k]
            c = cvm if cls == 'vm' else clg
            if c <= idx:
                raise Exception(f"no slot between producer and consumer: {ins.text}")
            n = c - idx - 1
            if cls == 'lg' and (is_smem or smem_pending):
                n = 0
            n = min(n, 63 if cls == 'vm' else 15)
            if cls == 'vm':
                sl.vm = n if sl.vm is None else min(sl.vm, n)
            else:
                sl.lgkm = n if sl.lgkm is None else min(sl.lgkm, n)
            done[cls] = max(done[cls], c - n)
            if cls == 'lg' and n == 0 and c == cnt['lg']:
                smem_pending = False
            changes += 1
        for r in ins.rd + ins.wr:
            pend.pop(r, None)
        if ins.kind == 'barrier':
            prebar = -1
        if ins.kind == 'vmem':
            for r in ins.wr:
                pend[r] = ('vm', cnt['vm'], False)
            cnt['vm'] += 1
        elif ins.kind == 'ds':
            for r in ins.wr:
                pend[r] = ('lg', cnt['lg'], False)
            if ins.pre_barrier:
                prebar = cnt['lg']
            cnt['lg'] += 1
        elif ins.kind == 'smem':
            for r in ins.wr:
                pend[r] = ('lg', cnt['lg'], True)
            cnt['lg'] += 1
            smem_pending = True
    return changes


def required_states(p, c):
    need = 0
    pw, cr, cw = set(p.wr), set(c.rd), set(c.wr)
    if p.kind == 'valu':
        vw = {r for r in pw if r[0] in 'va' and r != 'vcc'}
        sw = pw - vw
        if c.kind == 'mfma' and vw & cr:
            need = max(need, 2)
        if c.kind == 'valu':
            if p.op.replace('_e32', '').replace('_e64', '') in TRANS and c.op not in TRANS and vw & cr:
                need = max(need, 1)
            if c.op.startswith('v_permlane') and vw & cr:
                need = max(need, 2)
            if '_dpp' in c.op and vw & cr:
                need = max(need, 2)
            if c.op.startswith(('v_readfirstlane', 'v_readlane')) and vw & cr:
                need = max(need, 1)
            if sw & cr:
                need = max(need, 2)
        if c.kind == 'vmem' and sw & cr:
            need = max(need, 5)
        if c.kind in ('salu', 'branch') and sw & cr:
            need = max(need, 1)
    if p.kind == 'mfma':
        k = {4: 0, 8: 1}[p.passes]
        if c.kind == 'mfma':
            if pw & set(c.srca + c.srcb):
                need = max(need, (8, 12)[k])
            if pw & set(c.srcc):
                if not (list(p.wr) == list(c.srcc) and p.passes == c.passes):
                    need = max(need, (6, 10)[k])
            elif pw & cw and list(p.wr) != list(c.wr):
                need = max(need, (6, 10)[k])
        elif c.kind in ('valu', 'ds', 'vmem'):
            if pw & (cr | cw):
                need = max(need, (8, 12)[k])
            if c.kind == 'valu' and set(p.srcc) & cw:
                need = max(need, (3, 7)[k])
    if p.kind == 'salu' and 'm0' in pw and c.kind in ('ds', 'vmem') and 'm0' in cr:
        need = max(need, 1)
    if p.kind == 'vmem' and ('store' in p.op) and ('x4' in p.op or 'x3' in p.op):
        data = set(regs(p.ops[1] if p.op.startswith('global') else p.ops[0]))
        if data & cw:
            need = max(need, 2)
    return need


def check_hazards(trace):
    bad = []
    for i, c in enumerate(trace):
        if c.kind in ('label', 'slot', 'wait', 'nop'):
            continue
        dist = 0
        j = i - 1
        while j >= 0 and dist < 20:
            p = trace[j]
            if p.kind not in ('label', 'slot', 'wait', 'nop'):
                n = required_states(p, c)
                if n > dist:
                    bad.append((i, p, c, dist, n))
            dist += p.states()
            j -= 1
    return bad


def fix_hazards_linear(code):
    i = 0
    while i < len(code):
        c = code[i]
        if c.kind in ('label', 'slot', 'wait', 'nop'):
            i += 1
            continue
        dist, j, short = 0, i - 1, 0
        while j >= 0 and dist < 20:
            p = code[j]
            if p.kind not in ('label', 'slot', 'wait', 'nop'):
                short = max(short, required_states(p, c) - dist)
            dist += 0 if p.kind == 'slot' else p.states()
            j -= 1
        if short > 0:
            code.insert(i, I(f"s_nop {short - 1}"))
            i += 1
        i += 1


def render(code):
    out = []
    for ins in code:
        if ins.kind == 'slot':
            if ins.active():
                out.append("    " + ins.render())
        elif ins.kind == 'label':
            out.append(ins.text)
        else:
            out.append("    " + ins.text)
    return "\n".join(out) + "\n"


def issue_cycles(code):
    t = 0
    last_m = -100
    prev = None
    for ins in code:
        k = ins.kind
        if k == 'label' or (k == 'slot' and not ins.active()):
            continue
        if k == 'mfma':
            t = max(t, last_m + (16 if ins.passes == 4 else 32))
            last_m = t
            t += 4
        elif k in ('salu', 'wait', 'slot', 'barrier', 'branch', 'smem'):
            t += 4
        elif k == 'nop':
            t += 4 * ins.states()
        else:
            t = max(t, last_m + 8)
            if k == 'valu':
                if ins.op.startswith('v_pk_') and 'f32' in ins.op:
                    t = max(t, last_m + 28)
                t += 8 if (ins.op in TRANS or ins.op.startswith('v_permlane')) else 4
            else:
                if prev == 'valu':
                    t += 8
                nv = len([r for r in ins.rd if r[0] in 'va' and r != 'vcc'])
                t += 4 * max(nv, 1)
                if ins.op.startswith('buffer'):
                    t += 4
        prev = k
    return t
```

```python
from asmlib import *

LAT_DS = 110
VM_GAP = 64


def cost(ins, prev_kind):
    k = ins.kind
    if k == 'valu':
        return 8 if (ins.op in TRANS or ins.op.startswith('v_permlane')) else 4
    if k in ('ds', 'vmem'):
        nv = len([r for r in ins.rd if r[0] in 'va' and r != 'vcc'])
        return 4 * max(nv, 1) + (8 if prev_kind == 'valu' else 0)
    if k == 'barrier':
        return 24
    return 4


def latency(p, c, kind):
    if kind == 'raw':
        if p.kind == 'ds':
            return LAT_DS
        if p.kind == 'vmem':
            return getattr(p, 'lat', 1200)
        if p.kind == 'smem':
            return getattr(p, 'lat', 800)
        if p.kind == 'mfma':
            if c.kind == 'mfma' and list(p.wr) == list(c.srcc) and not (set(p.wr) & set(c.srca + c.srcb)):
                return 4 * p.passes
            return 4 * p.passes + 28
        if p.kind == 'valu' and c.kind == 'mfma':
            return 12
        return 4
    if kind == 'waw' and p.kind in ('ds', 'vmem', 'smem', 'mfma'):
        return latency(p, c, 'raw')
    if kind == 'tok':
        return 64 if (p.kind == 'ds' and c.kind == 'barrier') else 4
    return 4


def build_dag(code):
    n = len(code)
    preds = [dict() for _ in range(n)]
    lastw, readers = {}, {}
    for i, c in enumerate(code):
        rd = list(c.rd) + ['T:' + t for t in getattr(c, 'tok_rd', [])]
        wr = list(c.wr) + ['T:' + t for t in getattr(c, 'tok_wr', [])]

        def add(j, kind, r):
            if j == i:
                return
            l = latency(code[j], c, 'tok' if r.startswith('T:') else kind)
            preds[i][j] = max(preds[i].get(j, 0), l)
        for r in rd:
            if r in lastw:
                add(lastw[r], 'raw', r)
        for r in wr:
            if r in lastw:
                add(lastw[r], 'waw', r)
            for j in readers.get(r, []):
                add(j, 'war', r)
        for r in rd:
            readers.setdefault(r, []).append(i)
        for r in wr:
            lastw[r] = i
            readers[r] = []
    return preds


def schedule(code, t0=0, verbose=False):
    code = [c for c in code if c.kind not in ('slot', 'label')]
    n = len(code)
    preds = build_dag(code)
    succs = [[] for _ in range(n)]
    for i in range(n):
        for j, l in preds[i].items():
            succs[j].append((i, l))
    prio = [0] * n
    for i in reversed(range(n)):
        prio[i] = max([prio[j] + l for j, l in succs[i]] + [0])
        prio[i] = max(prio[i], getattr(code[i], 'tail', 0))
    for i in range(n):
        prio[i] += getattr(code[i], 'bias', 0)
    npred = [len(p) for p in preds]
    ready_t = [getattr(c, 'not_before', 0) for c in code]
    avail = [i for i in range(n) if npred[i] == 0]
    t, last_m, last_mlen, last_vm, prev = t0, -1000, 16, -1000, None
    out = []
    while avail:
        def start(i):
            c = code[i]
            s = max(t, ready_t[i])
            if c.kind == 'mfma':
                s = max(s, last_m + last_mlen)
            elif c.kind in ('valu', 'ds', 'vmem'):
                s = max(s, last_m + 8)
                if c.kind == 'valu' and c.op.startswith('v_pk_') and 'f32' in c.op:
                    s = max(s, last_m + last_mlen + 12)
                if c.kind == 'vmem':
                    s = max(s, last_vm + VM_GAP)
            return s
        st = {i: start(i) for i in avail}
        base = max(t, last_m + 8) if prev == 'mfma' else t
        now = [i for i in avail if st[i] <= base]
        if not now:
            m = min(st.values())
            now = [i for i in avail if st[i] == m]
        mf = [i for i in now if code[i].kind == 'mfma']
        if mf:
            pick = max(mf, key=lambda i: (prio[i], -i))
        else:
            def key(i):
                k = code[i].kind
                bonus = 0
                if k == 'vmem':
                    bonus = 100000
                elif k == 'ds' and prev in ('mfma', 'ds', 'vmem'):
                    bonus = 60
                return (prio[i] + bonus, -i)
            pick = max(now, key=key)
        c = code[pick]
        s = st[pick]
        if c.kind == 'mfma':
            last_m, last_mlen = s, 4 * c.passes
            t = s + 4
        else:
            t = s + cost(c, prev)
            if c.kind == 'vmem':
                last_vm = s
        c.sched_t = s
        prev = c.kind
        out.append(c)
        avail.remove(pick)
        for j, l in succs[pick]:
            ready_t[j] = max(ready_t[j], s + l)
            npred[j] -= 1
            if npred[j] == 0:
                avail.append(j)
    assert len(out) == n
    res = []
    for k, c in enumerate(out):
        res.append(Slot())
        res.append(c)
    res.append(Slot())
    return res, t
```

```python
import sys, struct, math, argparse
from asmlib import *
from sched import schedule

NAME = "standalone__kv_cache_quant_int4_int2_kv_with_per_channel_or_per_token_scales__prompt"


def f2u(x):
    return struct.unpack('<I', struct.pack('<f', x))[0]


KSZ = 17408
VB = 2 * KSZ
VSZ = 16512
TB = VB + 2 * VSZ
REC = 1792
FLAG = TB + 32 * REC
QB = FLAG + 256
LDS_BYTES = QB + KSZ
vG, vKR, vVR, vVW, vKC, vCT, vXB = 1, 2, 3, 4, 5, 6, 7
vBAD = 8
vT = 10
XB0 = 56
S0, P0, KS0, VS0, VP0, CI0, KC0 = 64, 128, 160, 192, 224, 240, 248
O0, X0, Q0, KF0, VF0 = 0, 128, 144, 208, 240
sQ, sK, sV, sKS, sKZ, sVS, sVZ, sO = 4, 6, 8, 10, 12, 14, 16, 18
sH, sQB, sW, sCNT, sPK, sINC, sT0, sT1 = 20, 21, 22, 23, 24, 25, 26, 27
sK0, sV0 = 28, 30
sC0 = 32

CSC = math.log2(math.e) / math.sqrt(128.0)
SIG = 32
POFF = 64


def Sreg(tb, qb): return S0 + (tb * 4 + qb) * 4
def Preg(qb, kk): return P0 + (qb * 2 + kk) * 4
def Oreg(db, qb): return O0 + (db * 4 + qb) * 4
def Qreg(qb, ks): return Q0 + (qb * 4 + ks) * 4
def KF(buf, ks): return KF0 + (buf * 4 + ks) * 4
def VF(buf, kk): return VF0 + (buf * 2 + kk) * 4


MF = "v_mfma_f32_16x16x32_bf16"


def lds(ins):
    ins.pre_barrier = True
    return ins


def k_read(buf, tb, ks, dst):
    off = buf * KSZ + (tb // 2) * 8704 + (tb % 2) * 2176 + 16 * ks
    return lds(I(f"ds_read_b128 {dst}, {V(vKR)} offset:{off}"))


def v_read(buf, db, kk, dst):
    off = buf * VSZ + (db * 2 + kk) * 1024 + (db // 4) * 64
    return lds(I(f"ds_read_b128 {dst}, {V(vVR)} offset:{off}"))


def k_write(buf, e, p, src):
    off = buf * KSZ + ((e // 4) * 2 + p) * 1088 + (e % 4) * 272
    return lds(I(f"ds_write_addtid_b32 {V(src)} offset:{off}"))


def v_write(buf, j, src):
    return lds(I(f"ds_write_b128 {V(vVW)}, {V(src, 4)} offset:{buf * VSZ + j * 2048}"))


def gap_pattern0(opt):
    g = [[] for _ in range(136)]
    memA = (['Kf'] * 4 + ['Ci'] + ['gV'] * 3) * 2 + ['Kf'] * 4 + ['Ci'] + ['gV'] * 2 + ['Kc'] + ['Vf'] * 4 + ['Kc', 'Ad']
    mi = 0
    for c in range(16):
        n = 4 * c
        other = ['Vp', 'Vp'] if c < 4 else ['E']
        if c < 15:
            g[n + 0] = [memA[mi], 'C']
            g[n + 1] = list(other)
            g[n + 2] = [memA[mi + 1], 'C']
            g[n + 3] = list(other)
            mi += 2
        else:
            for k in range(4):
                g[n + k] = ['E']
    B = [None] * 72
    B[0] = ['Xb', 'Xb']
    for b in range(1, 7):
        B[8 * b] = ['Vf', 'Vf']
    grp = [['W', 'Kp', 'Kp', 'Kp', 'Kp'], ['Kv', 'Kv'], ['a', 'Kv'], ['a', 'Kv'], ['gK', 'a'], ['a', 'gK']]
    for t, start in enumerate((1, 13, 25, 37)):
        m = start
        for k, x in enumerate(grp):
            while B[m] is not None:
                m += 1
            if k == 0:
                assert m % 2 == 1
            B[m] = list(x)
            m += 2 if k != 0 else 1
    B[56] = ['BAR', 'Kf', 'Kf']
    B[57] = ['Kf', 'Kf']
    B[58] = ['Ci', 'Ad']
    B[66] = ['C', 'C']
    for m in range(72):
        if B[m] is None:
            B[m] = ['E']
    ne = sum(x.count('E') for x in g) + sum(x.count('E') for x in B)
    m = 71
    while ne < 64:
        B[m].append('E')
        ne += 1
        m -= 2
    assert ne == 64
    B[69].append('Ad')
    for m in range(72):
        g[64 + m] = B[m]
    return g


def gap_pattern(opt):
    if opt.sched == 0:
        return gap_pattern0(opt)
    if opt.sched == 2:
        return gap_pattern2(opt)
    g = [None] * 136
    memA = (['Kf'] * 4 + ['Ci'] + ['gV'] * 3) * 2 + ['Kf'] * 4 + ['Ci'] + ['gV'] * 2 + ['Kc'] + ['Vf'] * 4 + ['Kc', 'Xb']
    mi = 0
    for c in range(16):
        n = 4 * c
        other = ['Vp', 'Vp'] if c < 4 else ['E']
        if c < 15:
            g[n + 0] = [memA[mi], 'C']
            g[n + 1] = list(other)
            g[n + 2] = [memA[mi + 1], 'C']
            g[n + 3] = list(other)
            mi += 2
    g[60] = ['Xb', 'Ad']
    W = ['W', 'Kp', 'Kp', 'Kp', 'Kp']
    B = {7: W, 15: W, 23: W, 39: W}
    for b in range(1, 7):
        B[8 * b] = ['Vf', 'Kv']
        B[8 * b + 1] = ['Vf', 'Kv']
    for m in (10, 18):
        B[m] = ['a', 'Kv']
        B[m + 1] = ['a', 'Kv']
        B[m + 2] = ['gK', 'a']
        B[m + 3] = ['a', 'gK']
    for m in (26, 42):
        B[m] = ['a', 'a']
        B[m + 8] = ['gK', 'a']
        B[m + 9] = ['a', 'gK']
    bar = opt.bar
    B[bar] = ['BAR', 'E']
    B[bar + 1] = ['Kf', 'Ad']
    B[bar + 3] = ['Ci', 'E']
    B[bar + 5] = ['Kf', 'E']
    B[65] = ['Kf', 'C']
    B[66] = ['Kf', 'C']
    for m, x in B.items():
        assert g[64 + m] is None, m
        g[64 + m] = list(x)
    for n in range(136):
        if g[n] is None:
            g[n] = ['E']
    ne = sum(x.count('E') for x in g)
    assert ne == 64, ne
    g[64 + 69].append('Ad')
    return g


def gap_pattern2(opt):
    g = [None] * 136
    memA = (['Kf'] * 4 + ['Ci'] + ['gV'] * 3) * 2 + ['Kf'] * 4 + ['Ci'] + ['gV'] * 2 + ['Kc'] + ['Kc'] + ['Vf'] * 4 + ['Xb']
    mi = 0
    for c in range(15):
        n = 4 * c
        other = ['Vp', 'Vp'] if c < 4 else ['E']
        g[n + 0] = list(other)
        g[n + 1] = [memA[mi], 'C']
        g[n + 2] = list(other)
        g[n + 3] = [memA[mi + 1], 'C']
        mi += 2
    g[61] = ['Xb', 'Ad']
    W = ['W', 'Kp', 'Kp', 'Kp', 'Kp']
    VK = ['Vf', 'Kv']
    seq = [W, W, ['Kv', 'Kv'], VK, VK, ['a', 'a'], ['a', 'gK'], VK, VK, ['a', 'gK'], W, VK, VK, ['a', 'a'], ['a', 'Kv'], VK, VK,
           ['a', 'Kv'], W, VK, VK, ['a', 'a'], ['a', 'a'], VK, VK, ['a', 'a'], ['a', 'a'], ['gK', 'Ad'], ['E'], ['E'],
           ['Kf', 'gK'], ['Ci', 'gK'], ['Kf', 'gK'], ['Kf', 'gK'], ['Kf', 'gK'], ['C', 'C']]
    assert len(seq) == 36
    for k, x in enumerate(seq):
        g[64 + 2 * k + 1] = list(x)
    g[64 + opt.bar] = ['BAR', 'E']
    for n in range(136):
        if g[n] is None:
            g[n] = ['E']
    ne = sum(x.count('E') for x in g)
    n = 63
    while ne < 64:
        g[n].append('E')
        ne += 1
    assert ne == 64, ne
    g[64 + 57].append('Ad')
    return g


class TabState:
    def __init__(self, base):
        self.base = {vKC: base, vCT: base, vXB: base}


def iteration(i, tab, opt, loop=False):
    doQK = i + 1 <= 31
    doPV = i >= 0
    doK = i + 2 <= 31
    doV = i + 1 <= 31
    ldK = i + 3 <= 31 or loop
    ldV = i + 2 <= 31
    kb = (i + 1) % 2
    vb = i % 2
    st = {}
    st['E'] = [I(f"v_exp_f32 {V(S0 + r)}, {V(S0 + r)}") if doQK else None for r in range(64)]

    def cvt(c, h):
        tb, qb = c // 4, c % 4
        return I(f"v_cvt_pk_bf16_f32 {V(Preg(qb, tb // 2) + 2 * (tb % 2) + h)}, {V(Sreg(tb, qb) + 2 * h)}, {V(Sreg(tb, qb) + 2 * h + 1)}")
    st['C'] = [cvt(c, h) if doPV else None for c in range(1, 16) for h in range(2)] + [cvt(0, h) if doQK else None for h in range(2)]
    st['Kf'] = [k_read(kb, tb, ks, A(KF(tb % 2, ks), 4)) if doQK else None for tb in (1, 2, 3) for ks in range(4)] + \
               [k_read(i % 2, 0, ks, A(KF(0, ks), 4)) if doK else None for ks in range(4)]
    st['Vf'] = [v_read(vb, db, kk, A(VF(db % 2, kk), 4)) if doPV else None for db in range(8) for kk in range(2)]
    st['Ci'] = [(vCT, i + 1, (tb // 2) * 128 + (tb % 2) * 16, CI0 + 4 * (tb % 2)) if doQK else None for tb in (1, 2, 3)] + \
               [(vCT, i + 2, 0, CI0) if doK else None]
    st['Kc'] = [(vKC, i + 2, 512 * h, KC0 + 4 * h) if doK else None for h in range(2)]
    st['Xb'] = [(vXB, i, 256 * kk, XB0 + 4 * kk) if doPV else None for kk in range(2)]
    st['Vp'] = [I(f"v_fma_f32 {V(VP0 + 4 * j + p)}, {V(VS0 + 4 * (2 * p + 1) + j)}, {S(sPK)}, {V(VS0 + 4 * (2 * p) + j)}") if doV else None
                for p in range(4) for j in range(4)]
    st['W'] = [v_write((i + 1) % 2, j, VP0 + 4 * j) if doV else None for j in range(4)]
    st['gV'] = [I(f"global_load_dwordx4 {V(VS0 + 4 * e, 4)}, {V(vG)}, {S(sV, 2)} offset:{512 * e}{opt.kvmod}") if ldV else None for e in range(8)]
    st['gK'] = [I(f"global_load_dwordx4 {V(KS0 + 4 * e, 4)}, {V(vG)}, {S(sK, 2)} offset:{512 * e}{opt.kvmod}") if ldK else None for e in range(8)]
    st['Kp'] = [I(f"v_pk_fma_f32 {V(KS0 + 4 * e + 2 * p, 2)}, {V(KS0 + 4 * e + 2 * p, 2)}, {V(KC0 + 2 * p, 2)}, {V(KC0 + 4 + 2 * p, 2)}") if doK else None
                for e in range(8) for p in range(2)]
    st['Kv'] = [I(f"v_cvt_pk_bf16_f32 {V(KS0 + 4 * e + 2 * p)}, {V(KS0 + 4 * e + 2 * p)}, {V(KS0 + 4 * e + 2 * p + 1)}") if doK else None
                for e in range(8) for p in range(2)]
    st['a'] = [k_write(i % 2, e, p, KS0 + 4 * e + 2 * p) if doK else None for e in range(8) for p in range(2)]
    st['BAR'] = [I("s_barrier") if (doK or doV) else None]
    adv = (i % 2 == 1) and i < 30
    st['Ad'] = [r if adv else None for r in (vKC, vXB, vCT)]
    mf = []
    for n in range(64):
        tb, qb, ks = n // 16, (n // 4) % 4, n % 4
        c = V(CI0 + 4 * (tb % 2), 4) if ks == 0 else V(Sreg(tb, qb), 4)
        mf.append(I(f"{MF} {V(Sreg(tb, qb), 4)}, {A(KF(tb % 2, ks), 4)}, {A(Qreg(qb, ks), 4)}, {c}") if doQK else None)
    for m in range(72):
        blk, qb, kk = m // 8, (m // 2) % 4, m % 2
        d = A(Oreg(blk, qb), 4) if blk < 8 else A(X0 + 4 * qb, 4)
        b = A(VF(blk % 2, kk), 4) if blk < 8 else V(XB0 + 4 * kk, 4)
        mf.append(I(f"{MF} {d}, {V(Preg(qb, kk), 4)}, {b}, {d}") if doPV else None)
    salu = []
    if ldV:
        salu.append((48, 130, [f"s_add_u32 {S(sV)}, {S(sV)}, 0x8000", f"s_addc_u32 {S(sV + 1)}, {S(sV + 1)}, 0"]))
    if ldK:
        if loop and i % 2 == 1:
            salu.append((2, 60, [f"s_cmp_eq_u32 {S(sCNT)}, 1", f"s_cselect_b32 {S(sINC)}, 0, 0x8000",
                                 f"s_add_u32 {S(sK)}, {S(sK)}, {S(sINC)}", f"s_addc_u32 {S(sK + 1)}, {S(sK + 1)}, 0"]))
        else:
            salu.append((2, 60, [f"s_add_u32 {S(sK)}, {S(sK)}, 0x8000", f"s_addc_u32 {S(sK + 1)}, {S(sK + 1)}, 0"]))
    if loop and i % 2 == 1:
        salu.append((124, 134, [f"s_sub_u32 {S(sCNT)}, {S(sCNT)}, 1", f"s_cmp_lg_u32 {S(sCNT)}, 0"]))
    pat = gap_pattern(opt)
    pos = {k: 0 for k in st}
    gaps = []
    for n in range(136):
        g = []
        for k in pat[n]:
            x = st[k][pos[k]]
            pos[k] += 1
            if x is None:
                continue
            if k in ('Ci', 'Kc', 'Xb'):
                reg, tile, off, dst = x
                x = I(f"ds_read_b128 {V(dst, 4)}, {V(reg)} offset:{(tile - tab.base[reg]) * REC + off}")
            elif k == 'Ad':
                tab.base[x] += 2
                x = I(f"v_add_u32 {V(x)}, {2 * REC}, {V(x)}")
            g.append(x)
        gaps.append(g)
    for k in st:
        assert pos[k] == len(st[k]), (k, pos[k], len(st[k]))
    return mf, gaps, salu


class Iter:
    def __init__(self, i, tab, opt, loop=False):
        self.mf, self.gaps, self.salu = iteration(i, tab, opt, loop)
        self.slots = [Slot() for _ in range(136)]
        self.extra = [[] for _ in range(136)]
        self.loop = loop

    def code(self):
        out = []
        for n in range(136):
            if self.mf[n] is not None:
                out.append(self.mf[n])
            g = self.gaps[n]
            if g and g[0].kind == 'barrier':
                out += g
            else:
                out.append(self.slots[n])
                out += self.extra[n]
                out += g
        return out

    def place_salu(self):
        busy = [self.slots[n].active() or (self.gaps[n] and self.gaps[n][0].kind == 'barrier') for n in range(136)]
        lo_all = 0
        for lo, hi, lst in sorted(self.salu):
            n = max(lo, lo_all)
            for t in lst:
                while busy[n]:
                    n += 1
                assert n <= hi, (lo, hi, lst)
                self.extra[n].append(I(t))
                busy[n] = True
            lo_all = n


class Lin:
    def __init__(self):
        self.c = []

    def __call__(self, t):
        for line in t.strip().split('\n'):
            line = line.strip()
            if line:
                self.c.append(I(line))
        return self.c[-1]

    def slot(self):
        self.c.append(Slot())

    def add(self, ins):
        self.c.append(ins)


def stamp(e, opt, k):
    if opt.stamp:
        e(f"""
        s_memtime s[76:77]
        s_waitcnt lgkmcnt(0)
        s_sub_u32 s76, s76, s64
        v_writelane_b32 v9, s76, {k}
        """)


def load_q(e, base, mod=""):
    for qb in range(4):
        for ks in range(4):
            e(f"global_load_dwordx4 {V(base + (qb * 4 + ks) * 4, 4)}, {V(vT + qb // 2)}, {S(sQ, 2)} offset:{(qb % 2) * 4096 - 4096 + 32 * ks}{mod}")


def q_addr(e):
    t = vT + 2
    e(f"""
    v_and_b32 {V(t)}, 3, v0
    v_lshlrev_b32 {V(t)}, 10, {V(t)}
    v_bfe_u32 {V(t + 1)}, v0, 2, 2
    v_lshl_add_u32 {V(t)}, {V(t + 1)}, 8, {V(t)}
    v_bfe_u32 {V(t + 1)}, v0, 4, 1
    v_lshl_add_u32 {V(t)}, {V(t + 1)}, 7, {V(t)}
    v_bfe_u32 {V(t + 1)}, v0, 5, 1
    v_lshl_add_u32 {V(t)}, {V(t + 1)}, 4, {V(t)}
    v_lshrrev_b32 {V(t + 1)}, 6, v0
    v_lshl_add_u32 {V(t)}, {V(t + 1)}, 14, {V(t)}
    v_add_u32 {V(vT)}, 0x1000, {V(t)}
    v_add_u32 {V(vT + 1)}, 0x3000, {V(t)}
    """)


def fix_q(e, base, scale):
    for f in range(16):
        b = base + 4 * f
        e.slot()
        if scale:
            for k in range(4):
                e(f"v_add_u32 {V(vT + 2 + k)}, {S(sC0)}, {V(b + k)}")
            for k in range(4):
                e(f"v_bitop3_b32 {V(vT + 6)}, {V(vT + 2 + k)}, {V(b + k)}, {V(vT + 6)} bitop3:0xbe")
            r = vT + 2
        else:
            r = b
        e(f"v_permlane32_swap_b32 {V(r)}, {V(r + 1)}")
        e(f"v_permlane32_swap_b32 {V(r + 2)}, {V(r + 3)}")
        for k, src in enumerate((0, 2, 1, 3)):
            e(f"v_accvgpr_write_b32 {A(Q0 + 4 * f + k)}, {V(r + src)}")


def tok(ins, rd=(), wr=()):
    ins.tok_rd = list(rd)
    ins.tok_wr = list(wr)
    return ins


def with_marks(code, opt):
    out = []
    for c in code:
        out.append(c)
        if getattr(c, 'mark', None) is not None and opt.stamp and opt.marks:
            l = Lin()
            stamp(l, opt, c.mark)
            out += l.c
    return out


def prologue(opt):
    h = Lin()
    e = Lin()
    aT0, aT1, aQ0, aQ1, aQW, aQR = 10, 11, 12, 13, 14, 15
    KSA, KZA, VSA, VZA = 16, 24, 32, 36
    K0 = P0
    sK1, sV1, sA, sB, sMK = 36, 38, 40, 42, 44

    def RQ(qb, j): return Sreg(j, qb)

    def ld(text, lat):
        x = tok(e(text), wr=['VM'])
        x.lat = lat
        return x

    def kv_loads(dst, sp, lat):
        for k in range(8):
            ld(f"global_load_dwordx4 {V(dst + 4 * k, 4)}, {V(vG)}, {S(sp, 2)} offset:{512 * k}{opt.kvmod}", lat)

    def q_loads(qb, lat):
        for j in range(4):
            ld(f"global_load_dwordx4 {V(RQ(qb, j), 4)}, {V(aQ0 + qb // 2)}, {S(sQ, 2)} offset:{(qb % 2) * 4096 - 4096 + 1024 * j}{opt.qmod}", lat)

    def xw(ins, *t):
        e.add(tok(lds(ins), rd=t or ['BAR']))
        return ins

    def barrier(mark, *t):
        x = tok(e("s_barrier"), wr=['BAR'] + list(t))
        x.mark = mark
        return x

    h(f"""
    s_cmp_ge_u32 s2, 256
    s_cbranch_scc1 L_end
    s_load_dwordx16 s[4:19], s[0:1], 0
    """)
    if opt.stamp:
        h("s_load_dwordx2 s[60:61], s[0:1], 72\ns_memrealtime s[62:63]\ns_memtime s[64:65]")
    if opt.diag:
        h("s_load_dwordx2 s[60:61], s[0:1], 64\ns_memrealtime s[62:63]\ns_memtime s[80:81]")
    if opt.codepf:
        h(f"""
        s_getpc_b64 {S(sK0, 2)}
        v_lshlrev_b32 {V(56)}, 6, v0
        global_load_dword {V(57)}, {V(56)}, {S(sK0, 2)}
        v_add_u32 {V(56)}, 0x4000, {V(56)}
        v_min_u32 {V(56)}, {opt.codepf}, {V(56)}
        global_load_dword {V(58)}, {V(56)}, {S(sK0, 2)}
        """)
    u = 40
    wK, wC, wX, chk, Z, QC = 59, 60, 61, 62, KC0, CI0
    h(f"""
    s_and_b32 {S(sH)}, s2, 7
    s_lshl_b32 {S(sH)}, {S(sH)}, 2
    s_lshr_b32 {S(sT0)}, s2, 6
    s_add_u32 {S(sH)}, {S(sH)}, {S(sT0)}
    s_bfe_u32 {S(sQB)}, s2, 0x30003
    v_mov_b32 {V(Z)}, 0
    v_mov_b32 {V(Z + 1)}, 0
    v_mov_b32 {V(Z + 2)}, 0
    v_mov_b32 {V(Z + 3)}, 0
    v_lshrrev_b32 {V(u)}, 5, v0
    v_and_b32 {V(u + 1)}, 31, v0
    """)
    zero = [f"v_mfma_f32_32x32x16_bf16 {A(16 * k, 16)}, {V(Z, 4)}, {V(Z, 4)}, 0" for k in range(9)]
    setup = f"""
    v_lshlrev_b32 {V(vG)}, 12, {V(u)}
    v_lshl_add_u32 {V(vG)}, {V(u + 1)}, 4, {V(vG)}
    v_lshlrev_b32 {V(aT0)}, 4, v0
    v_add_u32 {V(aT1)}, 0x1000, {V(aT0)}
    v_lshrrev_b32 {V(u + 2)}, 6, v0
    v_and_b32 {V(u + 3)}, 63, v0
    v_readfirstlane_b32 {S(sW)}, {V(u + 2)}
    v_lshlrev_b32 {V(vVR)}, 4, {V(u + 3)}
    v_lshl_add_u32 {V(aQ1)}, {V(u + 2)}, 14, {V(vVR)}
    v_add_u32 {V(aQ0)}, 0x1000, {V(aQ1)}
    v_add_u32 {V(aQ1)}, 0x3000, {V(aQ1)}
    v_add_u32 {V(vVR)}, {VB}, {V(vVR)}
    v_lshlrev_b32 {V(vKC)}, 4, {V(u + 1)}
    v_add_u32 {V(vKC)}, {TB}, {V(vKC)}
    v_and_b32 {V(u + 2)}, 1, v0
    v_mul_u32_u24 {V(vVW)}, 8256, {V(u + 2)}
    v_lshl_add_u32 {V(vVW)}, {V(u)}, 8, {V(vVW)}
    v_bfe_u32 {V(u + 2)}, v0, 1, 4
    v_lshl_add_u32 {V(vVW)}, {V(u + 2)}, 4, {V(vVW)}
    v_add_u32 {V(vVW)}, {VB}, {V(vVW)}
    v_mov_b32 {V(vBAD)}, 0
    v_bfe_u32 {V(u)}, v0, 3, 1
    v_mul_u32_u24 {V(vKR)}, 4352, {V(u)}
    v_bfe_u32 {V(u)}, v0, 5, 1
    v_mul_u32_u24 {V(aQW)}, 4352, {V(u)}
    v_lshl_add_u32 {V(aQW)}, {V(u + 1)}, 3, {V(aQW)}
    v_mul_u32_u24 {V(u + 1)}, 1088, {V(u)}
    v_add_u32 {V(vKR)}, {V(vKR)}, {V(u + 1)}
    v_and_b32 {V(u)}, 3, v0
    v_mul_u32_u24 {V(u)}, 272, {V(u)}
    v_add_u32 {V(vKR)}, {V(vKR)}, {V(u)}
    v_bfe_u32 {V(u)}, v0, 2, 1
    v_lshl_add_u32 {V(vKR)}, {V(u)}, 7, {V(vKR)}
    v_bfe_u32 {V(u)}, v0, 4, 1
    v_lshl_add_u32 {V(vKR)}, {V(u)}, 6, {V(vKR)}
    s_mul_i32 {S(sT0)}, {S(sW)}, 4352
    s_mov_b32 m0, {S(sT0)}
    s_lshr_b32 {S(sT0)}, {S(sW)}, 1
    s_mul_i32 {S(sT0)}, {S(sT0)}, 8704
    s_and_b32 {S(sT1)}, {S(sW)}, 1
    s_mul_i32 {S(sT1)}, {S(sT1)}, 2176
    s_add_u32 {S(sT0)}, {S(sT0)}, {S(sT1)}
    s_add_u32 {S(sT0)}, {S(sT0)}, {QB}
    v_add_u32 {V(aQR)}, {S(sT0)}, {V(vKR)}
    v_add_u32 {V(aQW)}, {S(sT0)}, {V(aQW)}
    v_bfe_u32 {V(u)}, v0, 4, 2
    v_lshlrev_b32 {V(vCT)}, 5, {V(u)}
    v_add_u32 {V(vCT)}, {TB + 1024}, {V(vCT)}
    v_and_b32 {V(u + 1)}, 15, v0
    v_min_u32 {V(u + 2)}, 3, {V(u + 1)}
    v_lshlrev_b32 {V(u + 2)}, 4, {V(u + 2)}
    v_lshl_add_u32 {V(vXB)}, {V(u)}, 6, {V(u + 2)}
    v_add_u32 {V(vXB)}, {TB + 1280}, {V(vXB)}
    v_lshrrev_b32 {V(u)}, 4, v0
    v_mul_u32_u24 {V(wK)}, {REC}, {V(u)}
    v_lshl_add_u32 {V(wK)}, {V(u + 1)}, 5, {V(wK)}
    v_add_u32 {V(wK)}, {TB}, {V(wK)}
    v_lshrrev_b32 {V(u)}, 3, v0
    v_mul_u32_u24 {V(wC)}, {REC}, {V(u)}
    v_and_b32 {V(u)}, 7, v0
    v_lshl_add_u32 {V(wX)}, {V(u)}, 6, {V(wC)}
    v_lshl_add_u32 {V(wC)}, {V(u)}, 5, {V(wC)}
    v_add_u32 {V(wC)}, {TB + 1024}, {V(wC)}
    v_add_u32 {V(wX)}, {TB + 1280}, {V(wX)}
    v_mov_b32 {V(chk)}, 0
    v_mov_b32 {V(chk + 1)}, 0
    s_mov_b32 {S(sPK)}, 0x47800000
    s_mov_b32 {S(sC0)}, {hex((SIG << 7) * 0x10001)}
    s_mov_b32 {S(sA)}, {hex(f2u(CSC * 2.0 ** (149 - SIG)))}
    s_mov_b32 {S(sA + 1)}, {S(sA)}
    s_mov_b32 {S(sB)}, {hex(f2u(-CSC * 2.0 ** (-SIG)))}
    s_mov_b32 {S(sB + 1)}, {S(sB)}
    s_mov_b32 {S(sMK)}, 0xffff0000
    s_mov_b32 {S(sCNT)}, 15
    s_lshl_b32 {S(sT0)}, {S(sH)}, 13
    s_lshl_b32 {S(sT1)}, {S(sH)}, 12
    s_lshl_b32 {S(sC0 + 1)}, {S(sH)}, 20
    s_lshl_b32 {S(sC0 + 2)}, {S(sH)}, 3
    s_add_u32 {S(sC0 + 2)}, {S(sC0 + 2)}, {S(sQB)}
    s_lshl_b32 {S(sC0 + 2)}, {S(sC0 + 2)}, 16
    """.strip().split('\n')
    for k, line in enumerate(setup):
        if k % 7 == 0 and zero:
            h(zero.pop())
        h(line)
    assert not zero
    h.add(lds(I(f"ds_write_b128 {V(wX)}, {V(Z, 4)} offset:48")))
    h("s_waitcnt lgkmcnt(0)")
    stamp(h, opt, 20)

    def add64(d, a, b):
        e(f"s_add_u32 {S(d)}, {S(a)}, {b}\ns_addc_u32 {S(d + 1)}, {S(a + 1)}, 0")
    add64(sKS, sKS, S(sT0))
    add64(sKZ, sKZ, S(sT0))
    add64(sVS, sVS, S(sT1))
    add64(sVZ, sVZ, S(sT1))
    add64(sQ, sQ, S(sC0 + 2))
    add64(sK0, sK, S(sC0 + 1))
    add64(sV0, sV, S(sC0 + 1))
    add64(sK1, sK0, "0x8000")
    add64(sV1, sV0, "0x8000")
    add64(sK, sK0, "0x10000")
    add64(sV, sV0, "0x10000")
    add64(sO, sO, S(sC0 + 2))
    def group(g, l):
        n0 = len(e.c)
        if g == 'T':
            ld(f"global_load_dwordx4 {V(KSA, 4)}, {V(aT0)}, {S(sKS, 2)}", l)
            ld(f"global_load_dwordx4 {V(KZA, 4)}, {V(aT0)}, {S(sKZ, 2)}", l)
            ld(f"global_load_dwordx4 {V(VSA, 4)}, {V(aT0)}, {S(sVS, 2)}", l)
        elif g == 't':
            ld(f"global_load_dwordx4 {V(VZA, 4)}, {V(aT0)}, {S(sVZ, 2)}", l)
            ld(f"global_load_dwordx4 {V(KSA + 4, 4)}, {V(aT1)}, {S(sKS, 2)}", l)
            ld(f"global_load_dwordx4 {V(KZA + 4, 4)}, {V(aT1)}, {S(sKZ, 2)}", l)
        elif g.startswith('Q'):
            q_loads(int(g[1]), l)
        elif g == 'K0':
            kv_loads(K0, sK0, l)
        elif g == 'K1':
            kv_loads(KS0, sK1, l)
        elif g == 'V0':
            kv_loads(VS0, sV0, l)
        elif g.startswith('B'):
            tok(e("s_barrier"), wr=['VM', 'BAR'])
        r = e.c[n0:]
        del e.c[n0:]
        return r
    for g, l in zip(opt.plan.split(','), (int(x) for x in opt.lat.split(','))):
        parts = [group(x, l) for x in g.split('+')]
        items = sorted(((k + 0.5) / len(p), pi, k) for pi, p in enumerate(parts) for k in range(len(p)))
        e.c += [parts[pi][k] for _, pi, k in items]
    TA, TBv = VP0, VP0 + 8

    def kcoef(s, t):
        for k in range(4):
            e(f"v_lshlrev_b32 {V(TA + 2 * k)}, 16, {V(KSA + 4 * s + k)}")
            e(f"v_and_b32 {V(TA + 2 * k + 1)}, {S(sMK)}, {V(KSA + 4 * s + k)}")
            e(f"v_lshlrev_b32 {V(TBv + 2 * k)}, 16, {V(KZA + 4 * s + k)}")
            e(f"v_and_b32 {V(TBv + 2 * k + 1)}, {S(sMK)}, {V(KZA + 4 * s + k)}")
        for k in range(4):
            m = KSA + 4 * s + 2 * (k % 2)
            e(f"v_pk_mul_f32 {V(m, 2)}, {V(TA + 2 * k, 2)}, {S(sB, 2)}")
            e(f"v_pk_mul_f32 {V(TA + 2 * k, 2)}, {V(TA + 2 * k, 2)}, {S(sA, 2)}")
            e(f"v_pk_mul_f32 {V(TBv + 2 * k, 2)}, {V(TBv + 2 * k, 2)}, {V(m, 2)}")
        for hh in range(2):
            xw(I(f"ds_write_b128 {V(wK)}, {V(TA + 4 * hh, 4)} offset:{s * 16 * REC + 16 * hh}"), t)
            xw(I(f"ds_write_b128 {V(wK)}, {V(TBv + 4 * hh, 4)} offset:{s * 16 * REC + 512 + 16 * hh}"), t)
        for k in range(4):
            e(f"v_pk_fma_f32 {V(chk, 2)}, {V(TA + 2 * k, 2)}, {V(TBv + 2 * k, 2)}, {V(chk, 2)}")
    kcoef(0, 'BAR')
    barrier(21)
    xw(I(f"ds_read_b128 {V(KC0, 4)}, {V(vKC)}"))
    xw(I(f"ds_read_b128 {V(KC0 + 4, 4)}, {V(vKC)} offset:512"))
    F, CT = 40, 48
    for k in range(4):
        e(f"v_lshlrev_b32 {V(F + 2 * k)}, 16, {V(VSA + k)}")
        e(f"v_and_b32 {V(F + 2 * k + 1)}, {S(sMK)}, {V(VSA + k)}")
    for k in range(8):
        e(f"v_log_f32 {V(CT + k)}, {V(F + k)}")
    for k in range(8):
        e(f"v_add_f32 {V(CT + k)}, {hex(f2u(float(POFF)))}, {V(CT + k)}")
    xw(I(f"ds_write_b128 {V(wC)}, {V(CT, 4)}"), 'B2')
    xw(I(f"ds_write_b128 {V(wC)}, {V(CT + 4, 4)} offset:16"), 'B2')

    def kdeq(base, buf, t):
        for tk in range(8):
            b = base + 4 * tk
            for p in range(2):
                e(f"v_pk_fma_f32 {V(b + 2 * p, 2)}, {V(b + 2 * p, 2)}, {V(KC0 + 2 * p, 2)}, {V(KC0 + 4 + 2 * p, 2)}")
            for p in range(2):
                e(f"v_cvt_pk_bf16_f32 {V(b + 2 * p)}, {V(b + 2 * p)}, {V(b + 2 * p + 1)}")
            for p in range(2):
                xw(k_write(buf, tk, p, b + 2 * p), t)
    kdeq(K0, 0, 'B2')
    e(f"ds_read_b128 {V(KC0, 4)}, {V(vKC)} offset:{REC}")
    e(f"ds_read_b128 {V(KC0 + 4, 4)}, {V(vKC)} offset:{REC + 512}")
    barrier(22, 'B2')
    CIx = (CI0 + 4, 16, 32, 24)

    def KFx(tb, ks): return A(KF(tb, ks), 4) if tb < 2 else V(P0 + 16 * (tb - 2) + 4 * ks, 4)
    for tb in range(4):
        xw(I(f"ds_read_b128 {V(CIx[tb], 4)}, {V(vCT)} offset:{(tb // 2) * 128 + (tb % 2) * 16}"))
        for ks in range(4):
            xw(k_read(0, tb, ks, KFx(tb, ks)))
    RI, HI, LO = CT, VP0 + 8, VP0 + 12
    for k in range(8):
        e(f"v_rcp_f32 {V(RI + k)}, {V(F + k)}")
    mn, mx = VP0, VP0 + 1
    e(f"""
    v_min3_u32 {V(mn)}, {V(F)}, {V(F + 1)}, {V(F + 2)}
    v_max3_u32 {V(mx)}, {V(F)}, {V(F + 1)}, {V(F + 2)}
    v_min3_u32 {V(mn)}, {V(F + 3)}, {V(F + 4)}, {V(mn)}
    v_max3_u32 {V(mx)}, {V(F + 3)}, {V(F + 4)}, {V(mx)}
    v_min3_u32 {V(mn)}, {V(F + 5)}, {V(F + 6)}, {V(mn)}
    v_max3_u32 {V(mx)}, {V(F + 5)}, {V(F + 6)}, {V(mx)}
    v_min_u32 {V(mn)}, {V(F + 7)}, {V(mn)}
    v_max_u32 {V(mx)}, {V(F + 7)}, {V(mx)}
    v_cmp_gt_u32 vcc, {hex(f2u(2.0 ** -16))}, {V(mn)}
    v_cndmask_b32 {V(vBAD)}, {V(vBAD)}, 1, vcc
    v_cmp_lt_u32 vcc, {hex(f2u(2.0 ** 8))}, {V(mx)}
    v_cndmask_b32 {V(vBAD)}, {V(vBAD)}, 1, vcc
    """)
    for k in range(4):
        e(f"v_cvt_pk_bf16_f32 {V(HI + k)}, {V(RI + 2 * k)}, {V(RI + 2 * k + 1)}")
    for k in range(4):
        e(f"v_lshlrev_b32 {V(F + 2 * k)}, 16, {V(HI + k)}")
        e(f"v_and_b32 {V(F + 2 * k + 1)}, {S(sMK)}, {V(HI + k)}")
        e(f"v_sub_f32 {V(F + 2 * k)}, {V(RI + 2 * k)}, {V(F + 2 * k)}")
        e(f"v_sub_f32 {V(F + 2 * k + 1)}, {V(RI + 2 * k + 1)}, {V(F + 2 * k + 1)}")
        e(f"v_cvt_pk_bf16_f32 {V(LO + k)}, {V(F + 2 * k)}, {V(F + 2 * k + 1)}")
    xw(I(f"ds_write_b128 {V(wX)}, {V(HI, 4)}"), 'B3')
    xw(I(f"ds_write_b128 {V(wX)}, {V(LO, 4)} offset:16"), 'B3')
    xw(I(f"ds_write_b128 {V(wX)}, {V(VZA, 4)} offset:32"), 'B3')
    kcoef(1, 'B3')

    def fixq(qb):
        T = 40
        for j in range(4):
            b = RQ(qb, j)
            e(f"{MF} {V(QC, 4)}, {V(b, 4)}, {V(b, 4)}, {'0' if qb == 0 and j == 0 else V(QC, 4)}")
            for k, d in enumerate((0, 2, 1, 3)):
                e(f"v_add_u32 {V(T + 4 * j + d)}, {S(sC0)}, {V(b + k)}")
            tok(e(f"ds_write2_b64 {V(aQW)}, {V(T + 4 * j, 2)}, {V(T + 4 * j + 2, 2)} offset0:{34 * j} offset1:{34 * j + 136}"), wr=[f"QS{j}"])
        for ks in range(4):
            tok(e(f"ds_read_b128 {A(Qreg(qb, ks), 4)}, {V(aQR)} offset:{16 * ks}"), rd=[f"QS{j}" for j in range(4)])

    def qk(qb):
        for tb in range(4):
            for ks in range(4):
                c = V(CIx[tb], 4) if ks == 0 else V(Sreg(tb, qb), 4)
                x = tok(e(f"{MF} {V(Sreg(tb, qb), 4)}, {KFx(tb, ks)}, {A(Qreg(qb, ks), 4)}, {c}"), wr=['QK'])
                if tb == 0 and ks == 0:
                    x.mark = 28 + qb
            for r in range(4):
                e(f"v_exp_f32 {V(Sreg(tb, qb) + r)}, {V(Sreg(tb, qb) + r)}")
    kdeq(KS0, 1, 'B3')
    for p in range(4):
        for j in range(4):
            e(f"v_fma_f32 {V(VP0 + 4 * j + p)}, {V(VS0 + 4 * (2 * p + 1) + j)}, {S(sPK)}, {V(VS0 + 4 * (2 * p) + j)}")
    for j in range(4):
        xw(v_write(0, j, VP0 + 4 * j), 'B3')
    kv_loads(VS0, sV1, 0)
    kv_loads(KS0, sK, 0)
    barrier(23, 'B3')
    for qb in range(4):
        fixq(qb)
        qk(qb)
    for k in range(4):
        e(f"v_fma_f32 {V(chk)}, {V(QC + k)}, 0, {V(chk)}")
    e(f"""
    v_add_f32 {V(chk)}, {V(chk)}, {V(chk + 1)}
    v_fma_f32 {V(chk)}, {V(chk)}, 0, 0
    v_cmp_u_f32 vcc, {V(chk)}, {V(chk)}
    v_cndmask_b32 {V(vBAD)}, {V(vBAD)}, 1, vcc
    """)
    tok(e(f"ds_read_b128 {V(CI0, 4)}, {V(vCT)} offset:{REC}"), rd=['B2']).tail = 110
    for ks in range(4):
        xw(k_read(1, 0, ks, A(KF(0, ks), 4))).tail = 110
    for hh in range(2):
        e(f"v_cvt_pk_bf16_f32 {V(Preg(0, 0) + hh)}, {V(Sreg(0, 0) + 2 * hh)}, {V(Sreg(0, 0) + 2 * hh + 1)}")
    import sched
    sched.VM_GAP = opt.vmgap
    body, tend = schedule(e.c, 700)
    print("prologue schedule ends at", tend, file=sys.stderr)
    f = Lin()
    if opt.stamp:
        f("s_memtime s[66:67]\ns_memrealtime s[90:91]\nv_and_b32 v54, 63, v0")
    if opt.diag:
        f("s_memrealtime s[66:67]\ns_memtime s[82:83]")
    f.slot()
    return h.c + with_marks(body, opt) + f.c


def out_addr(e):
    e(f"""
    v_and_b32 {V(vT + 2)}, 63, v0
    v_lshlrev_b32 {V(vT + 2)}, 4, {V(vT + 2)}
    v_lshrrev_b32 {V(vT + 3)}, 6, v0
    v_lshl_add_u32 {V(vT + 2)}, {V(vT + 3)}, 14, {V(vT + 2)}
    v_add_u32 {V(vT)}, 0x1000, {V(vT + 2)}
    v_add_u32 {V(vT + 1)}, 0x3000, {V(vT + 2)}
    """)


def epilogue(opt):
    e = Lin()
    if opt.stamp:
        e("s_memtime s[68:69]\ns_memrealtime s[92:93]\ns_getreg_b32 s94, hwreg(HW_REG_XCC_ID)")
    if opt.diag:
        e("s_memrealtime s[68:69]\ns_memtime s[84:85]")
    out_addr(e)
    mn, mx, chk = vT + 2, vT + 3, vT + 4
    X, L, CA, CB = 16, 20, 24, 28
    e(f"""
    v_mov_b32 {V(mn)}, -1
    v_mov_b32 {V(mx)}, 0
    v_mov_b32 {V(chk)}, 0
    s_movk_i32 {S(sC0)}, 133
    """)
    dpp = "row_mask:0xf bank_mask:0xf"
    for qb in range(4):
        for r in range(4):
            e(f"v_accvgpr_read_b32 {V(X + r)}, {A(X0 + 4 * qb + r)}")
        for r in range(4):
            e(f"v_mov_b32_dpp {V(L + r)}, {V(X + r)} row_newbcast:0 {dpp}")
        for r in range(4):
            e(f"v_add_f32_dpp {V(L + r)}, {V(X + r)}, {V(L + r)} row_newbcast:1 {dpp}")
        for r in range(4):
            e(f"v_mov_b32_dpp {V(CB + r)}, {V(X + r)} row_newbcast:2 {dpp}")
        for r in range(4):
            e(f"v_rcp_f32 {V(CA + r)}, {V(L + r)}")
        e(f"""
        v_min3_u32 {V(mn)}, {V(L)}, {V(L + 1)}, {V(mn)}
        v_max3_u32 {V(mx)}, {V(L)}, {V(L + 1)}, {V(mx)}
        v_min3_u32 {V(mn)}, {V(L + 2)}, {V(L + 3)}, {V(mn)}
        v_max3_u32 {V(mx)}, {V(L + 2)}, {V(L + 3)}, {V(mx)}
        """)
        for r in range(4):
            e(f"v_mul_f32 {V(CB + r)}, {V(CB + r)}, {V(CA + r)}")
        for r in range(4):
            e(f"v_ldexp_f32 {V(CA + r)}, {V(CA + r)}, {S(sC0)}")
        for r in range(4):
            e(f"v_fma_f32 {V(chk)}, {V(CB + r)}, 0, {V(chk)}")
        for r in range(4):
            T = S0 + 8 * ((qb * 4 + r) % 8)
            D = P0 + 4 * ((qb * 4 + r) % 8)
            for db in range(8):
                e(f"v_accvgpr_read_b32 {V(T + db)}, {A(Oreg(db, qb) + r)}")
            for db in range(8):
                e(f"v_fma_f32 {V(T + db)}, {V(T + db)}, {V(CA + r)}, -{V(CB + r)}")
            if qb == 0 and r == 0:
                for db in range(8):
                    e(f"v_fma_f32 {V(chk)}, {V(T + db)}, 0, {V(chk)}")
            for k in range(4):
                e(f"v_cvt_pk_bf16_f32 {V(D + k)}, {V(T + 2 * k)}, {V(T + 2 * k + 1)}")
            e(f"global_store_dwordx4 {V(vT + qb // 2)}, {V(D, 4)}, {S(sO, 2)} offset:{(qb % 2) * 4096 - 4096 + 1024 * r}{opt.omod}")
    e(f"""
    v_cmp_gt_u32 vcc, {hex(f2u(2.0 ** (POFF - 10)))}, {V(mn)}
    v_cndmask_b32 {V(vBAD)}, {V(vBAD)}, 1, vcc
    v_cmp_lt_u32 vcc, {hex(f2u(2.0 ** (POFF + 40)))}, {V(mx)}
    v_cndmask_b32 {V(vBAD)}, {V(vBAD)}, 1, vcc
    v_cmp_u_f32 vcc, {V(chk)}, {V(chk)}
    v_cndmask_b32 {V(vBAD)}, {V(vBAD)}, 1, vcc
    """)
    if opt.force_slow:
        e(f"v_mov_b32 {V(vBAD)}, 1")
    e(f"""
    v_cmp_ne_u32 vcc, 0, {V(vBAD)}
    s_or_b32 {S(sT0)}, vcc_lo, vcc_hi
    s_lshl_b32 {S(sT1)}, {S(sW)}, 2
    s_add_u32 {S(sT1)}, {S(sT1)}, {FLAG}
    v_mov_b32 {V(X)}, {S(sT0)}
    v_mov_b32 {V(X + 1)}, {S(sT1)}
    v_mov_b32 {V(X + 2)}, {FLAG}
    """)
    e.c[-6].rd = ['vcc']
    e.add(lds(I(f"ds_write_b32 {V(X + 1)}, {V(X)}")))
    e.slot()
    e("s_barrier")
    e(f"ds_read_b128 {V(L, 4)}, {V(X + 2)}")
    e.slot()
    e(f"""
    v_or_b32 {V(L)}, {V(L)}, {V(L + 1)}
    v_or3_b32 {V(L)}, {V(L)}, {V(L + 2)}, {V(L + 3)}
    v_readfirstlane_b32 {S(sT0)}, {V(L)}
    """)
    if opt.stamp:
        e(f"""
        s_waitcnt vmcnt(0)
        s_memtime s[70:71]
        s_memrealtime s[72:73]
        s_waitcnt lgkmcnt(0)
        s_sub_u32 s66, s66, s64
        s_sub_u32 s68, s68, s64
        s_sub_u32 s70, s70, s64
        v_mov_b32 v16, s66
        v_mov_b32 v17, s68
        v_mov_b32 v18, s70
        v_mov_b32 v19, s62
        v_mov_b32 v20, s72
        v_mov_b32 v21, s90
        v_mov_b32 v22, s92
        v_mov_b32 v23, s94
        s_lshl_b32 s74, s2, 2
        s_add_u32 s74, s74, {S(sW)}
        s_lshl_b32 s74, s74, 5
        v_mov_b32 v24, s74
        global_store_dwordx4 v24, v[16:19], s[60:61]
        global_store_dwordx4 v24, v[20:23], s[60:61] offset:16
        v_and_b32 v25, 63, v0
        v_lshlrev_b32 v25, 2, v25
        s_lshl_b32 s74, s74, 3
        s_add_u32 s74, s74, 0x10000
        v_add_u32 v25, s74, v25
        global_store_dword v25, v9, s[60:61]
        """)
    if opt.diag:
        e("""
        s_waitcnt vmcnt(0)
        s_memrealtime s[70:71]
        s_memtime s[86:87]
        s_waitcnt lgkmcnt(0)
        s_sub_u32 s72, s66, s62
        s_sub_u32 s73, s68, s66
        s_sub_u32 s74, s70, s68
        s_sub_u32 s76, s82, s80
        s_sub_u32 s77, s84, s82
        s_sub_u32 s78, s86, s84
        """)
        if opt.diag == 'dbg':
            e(f"""
            s_and_b32 s75, s2, 0x7f
            s_or_b32 s75, s75, {S(sW)}
            s_cmp_lg_u32 s75, 0
            s_cbranch_scc1 L_nodbg
            s_lshr_b32 s75, s2, 2
            v_mov_b32 v16, s72
            v_mov_b32 v17, s73
            v_mov_b32 v18, s74
            v_mov_b32 v19, s62
            v_mov_b32 v20, s76
            v_mov_b32 v21, s77
            v_mov_b32 v22, s78
            v_mov_b32 v23, s70
            v_mov_b32 v24, s75
            global_store_dwordx4 v24, v[16:19], s[60:61]
            global_store_dwordx4 v24, v[20:23], s[60:61] offset:16
            L_nodbg:
            """)
        elif opt.diag != 'none':
            r = {'P': 72, 'M': 73, 'E': 74}[opt.diag]
            e(f"""
            s_lshl_b32 s75, s{r}, 2
            s_min_u32 s75, s75, 100000
            L_spin:
            s_memrealtime s[88:89]
            s_waitcnt lgkmcnt(0)
            s_sub_u32 s88, s88, s70
            s_cmp_lt_u32 s88, s75
            s_cbranch_scc1 L_spin
            """)
    e(f"""
    s_cmp_eq_u32 {S(sT0)}, 0
    s_cbranch_scc1 L_end
    """)
    return e.c


def careful(opt):
    blocks = []
    sPASS, sTILE, sC, sM = 34, 35, 36, 37
    sKt, sVt = 38, 40
    M0 = 44
    ONES = XB0
    aKC, aVC = 48, 49
    e = Lin()
    e("L_careful:")
    e("s_waitcnt vmcnt(0) lgkmcnt(0)")
    q_addr(e)
    load_q(e, S0)
    e(f"""
    s_mov_b32 {S(sPASS)}, 0
    s_mov_b32 {S(sC)}, {hex(f2u(CSC))}
    s_mov_b32 {S(sM)}, 0xffff0000
    s_waitcnt vmcnt(0)
    """)
    fix_q(e, S0, False)
    for r in range(144):
        e(f"v_accvgpr_write_b32 {A(r)}, 0")
    for k in range(4):
        e(f"v_mov_b32 {V(M0 + k)}, 0xff800000")
        e(f"v_mov_b32 {V(ONES + k)}, 0x3f803f80")
    e("s_nop 7")
    blocks.append(e.c)

    e = Lin()
    e("L_c_pass:")
    e(f"""
    s_mov_b32 {S(sTILE)}, 0
    s_mov_b64 {S(sKt, 2)}, {S(sK0, 2)}
    s_mov_b64 {S(sVt, 2)}, {S(sV0, 2)}
    v_and_b32 {V(aKC)}, 31, v0
    v_lshlrev_b32 {V(aKC)}, 3, {V(aKC)}
    v_lshrrev_b32 {V(aVC)}, 5, v0
    v_lshlrev_b32 {V(aVC)}, 4, {V(aVC)}
    """)
    blocks.append(e.c)

    def rnd(e, a, b):
        e(f"v_cvt_pk_bf16_f32 {V(b)}, {V(a)}, {V(b)}")
        e(f"v_lshlrev_b32 {V(a)}, 16, {V(b)}")
        e(f"v_and_b32 {V(b)}, {S(sM)}, {V(b)}")

    e = Lin()
    e("L_c_tile:")
    KSr, KZr, VSr, VZr = 16, 18, 20, 24
    U = 28
    for t in range(8):
        e(f"global_load_dwordx4 {V(KS0 + 4 * t, 4)}, {V(vG)}, {S(sKt, 2)} offset:{512 * t}")
        e(f"global_load_dwordx4 {V(VS0 + 4 * t, 4)}, {V(vG)}, {S(sVt, 2)} offset:{512 * t}")
    e(f"""
    global_load_dwordx2 {V(KSr, 2)}, {V(aKC)}, {S(sKS, 2)}
    global_load_dwordx2 {V(KZr, 2)}, {V(aKC)}, {S(sKZ, 2)}
    global_load_dwordx4 {V(VSr, 4)}, {V(aVC)}, {S(sVS, 2)}
    global_load_dwordx4 {V(VZr, 4)}, {V(aVC)}, {S(sVZ, 2)}
    s_add_u32 {S(sKt)}, {S(sKt)}, 0x8000
    s_addc_u32 {S(sKt + 1)}, {S(sKt + 1)}, 0
    s_add_u32 {S(sVt)}, {S(sVt)}, 0x8000
    s_addc_u32 {S(sVt + 1)}, {S(sVt + 1)}, 0
    v_add_u32 {V(aKC)}, 256, {V(aKC)}
    v_add_u32 {V(aVC)}, 128, {V(aVC)}
    s_waitcnt vmcnt(0)
    """)
    for k in range(2):
        e(f"v_lshlrev_b32 {V(U + 2 * k)}, 16, {V(KSr + k)}")
        e(f"v_and_b32 {V(U + 2 * k + 1)}, {S(sM)}, {V(KSr + k)}")
        e(f"v_lshlrev_b32 {V(U + 4 + 2 * k)}, 16, {V(KZr + k)}")
        e(f"v_and_b32 {V(U + 4 + 2 * k + 1)}, {S(sM)}, {V(KZr + k)}")
    for t in range(8):
        for p in range(2):
            a = KS0 + 4 * t + 2 * p
            e(f"v_cvt_f32_i32 {V(a)}, {V(a)}")
            e(f"v_cvt_f32_i32 {V(a + 1)}, {V(a + 1)}")
            rnd(e, a, a + 1)
            e(f"v_sub_f32 {V(a)}, {V(a)}, {V(U + 4 + 2 * p)}")
            e(f"v_sub_f32 {V(a + 1)}, {V(a + 1)}, {V(U + 4 + 2 * p + 1)}")
            rnd(e, a, a + 1)
            e(f"v_mul_f32 {V(a)}, {V(a)}, {V(U + 2 * p)}")
            e(f"v_mul_f32 {V(a + 1)}, {V(a + 1)}, {V(U + 2 * p + 1)}")
            e(f"v_cvt_pk_bf16_f32 {V(a)}, {V(a)}, {V(a + 1)}")
    for k in range(4):
        e(f"v_lshlrev_b32 {V(U + 2 * k)}, 16, {V(VSr + k)}")
        e(f"v_and_b32 {V(U + 2 * k + 1)}, {S(sM)}, {V(VSr + k)}")
        e(f"v_lshlrev_b32 {V(U + 8 + 2 * k)}, 16, {V(VZr + k)}")
        e(f"v_and_b32 {V(U + 8 + 2 * k + 1)}, {S(sM)}, {V(VZr + k)}")
    for p in range(4):
        for j in range(4):
            a, b = VS0 + 8 * p + j, VS0 + 8 * p + 4 + j
            e(f"v_cvt_f32_i32 {V(a)}, {V(a)}")
            e(f"v_cvt_f32_i32 {V(b)}, {V(b)}")
            rnd(e, a, b)
            e(f"v_sub_f32 {V(a)}, {V(a)}, {V(U + 8 + 2 * p)}")
            e(f"v_sub_f32 {V(b)}, {V(b)}, {V(U + 8 + 2 * p + 1)}")
            rnd(e, a, b)
            e(f"v_mul_f32 {V(a)}, {V(a)}, {V(U + 2 * p)}")
            e(f"v_mul_f32 {V(b)}, {V(b)}, {V(U + 2 * p + 1)}")
            e(f"v_cvt_pk_bf16_f32 {V(VP0 + 4 * j + p)}, {V(a)}, {V(b)}")
    e("s_waitcnt lgkmcnt(0)\ns_barrier")
    for t in range(8):
        for p in range(2):
            e.add(k_write(0, t, p, KS0 + 4 * t + 2 * p))
    for j in range(4):
        e.add(v_write(0, j, VP0 + 4 * j))
    e("s_waitcnt lgkmcnt(0)\ns_barrier")
    for tb in range(4):
        for ks in range(4):
            e.add(k_read(0, tb, ks, A(KF(0, ks), 4)))
        e("s_waitcnt lgkmcnt(0)")
        for qb in range(4):
            for ks in range(4):
                c = "0" if ks == 0 else V(Sreg(tb, qb), 4)
                e(f"{MF} {V(Sreg(tb, qb), 4)}, {A(KF(0, ks), 4)}, {A(Qreg(qb, ks), 4)}, {c}")
        e("s_nop 7")
    e(f"""
    s_nop 7
    s_cmp_lg_u32 {S(sPASS)}, 0
    s_cbranch_scc1 L_c_acc
    """)
    for tb in range(4):
        for qb in range(4):
            s = Sreg(tb, qb)
            e(f"v_max3_f32 {V(M0 + qb)}, {V(s)}, {V(s + 1)}, {V(M0 + qb)}")
            e(f"v_max3_f32 {V(M0 + qb)}, {V(s + 2)}, {V(s + 3)}, {V(M0 + qb)}")
    e("s_branch L_c_next")
    blocks.append(e.c)

    e = Lin()
    e("L_c_acc:")
    for tb in range(4):
        for qb in range(4):
            s = Sreg(tb, qb)
            for r in range(4):
                e(f"v_sub_f32 {V(s + r)}, {V(s + r)}, {V(M0 + qb)}")
            for r in range(4):
                e(f"v_mul_f32 {V(s + r)}, {S(sC)}, {V(s + r)}")
            for r in range(4):
                e(f"v_exp_f32 {V(s + r)}, {V(s + r)}")
            for h in range(2):
                e(f"v_cvt_pk_bf16_f32 {V(Preg(qb, tb // 2) + 2 * (tb % 2) + h)}, {V(s + 2 * h)}, {V(s + 2 * h + 1)}")
    for blk in range(9):
        if blk < 8:
            for kk in range(2):
                e.add(v_read(0, blk, kk, A(VF(0, kk), 4)))
            e("s_waitcnt lgkmcnt(0)")
        for qb in range(4):
            for kk in range(2):
                d = A(Oreg(blk, qb), 4) if blk < 8 else A(X0 + 4 * qb, 4)
                b = A(VF(0, kk), 4) if blk < 8 else V(ONES, 4)
                e(f"{MF} {d}, {V(Preg(qb, kk), 4)}, {b}, {d}")
        e("s_nop 7")
    blocks.append(e.c)

    e = Lin()
    e("L_c_next:")
    e(f"""
    s_nop 7
    s_add_u32 {S(sTILE)}, {S(sTILE)}, 1
    s_cmp_lt_u32 {S(sTILE)}, 32
    s_cbranch_scc1 L_c_tile
    s_cmp_lg_u32 {S(sPASS)}, 0
    s_cbranch_scc1 L_c_out
    """)
    for qb in range(4):
        for sw in ("v_permlane32_swap_b32", "v_permlane16_swap_b32"):
            e(f"v_mov_b32 {V(16)}, {V(M0 + qb)}")
            e(f"{sw} {V(M0 + qb)}, {V(16)}")
            e(f"v_max_f32 {V(M0 + qb)}, {V(M0 + qb)}, {V(16)}")
    e(f"""
    s_mov_b32 {S(sPASS)}, 1
    s_branch L_c_pass
    """)
    blocks.append(e.c)

    e = Lin()
    e("L_c_out:")
    out_addr(e)
    CA = 24
    for qb in range(4):
        for r in range(4):
            e(f"v_accvgpr_read_b32 {V(CA + r)}, {A(X0 + 4 * qb + r)}")
        for r in range(4):
            e(f"v_rcp_f32 {V(CA + r)}, {V(CA + r)}")
        for r in range(4):
            T = S0 + 8 * ((qb * 4 + r) % 8)
            D = P0 + 4 * ((qb * 4 + r) % 8)
            for db in range(8):
                e(f"v_accvgpr_read_b32 {V(T + db)}, {A(Oreg(db, qb) + r)}")
            for db in range(8):
                e(f"v_mul_f32 {V(T + db)}, {V(T + db)}, {V(CA + r)}")
            for k in range(4):
                e(f"v_cvt_pk_bf16_f32 {V(D + k)}, {V(T + 2 * k)}, {V(T + 2 * k + 1)}")
            e(f"global_store_dwordx4 {V(vT + qb // 2)}, {V(D, 4)}, {S(sO, 2)} offset:{(qb % 2) * 4096 - 4096 + 1024 * r}")
    blocks.append(e.c)
    out = []
    for b in blocks:
        b = [x for x in b if x.kind != 'slot']
        fix_hazards_linear(b)
        place_waits(b, fix=False)
        out += b
    return out


def build(opt):
    tab = TabState(0)
    pro = prologue(opt)
    base0 = dict(tab.base)
    it0 = Iter(0, tab, opt, loop=True)
    it1 = Iter(1, tab, opt, loop=True)
    assert all(tab.base[r] == base0[r] + 2 for r in base0)
    tab.base = {r: v + 28 for r, v in tab.base.items()}
    it30 = Iter(30, tab, opt)
    it31 = Iter(31, tab, opt)
    epi = epilogue(opt)
    head, tail = I("L_loop:"), I("s_cbranch_scc1 L_loop")
    align = I(".p2align 3")

    lst = []
    preloop = Lin()
    if opt.stamp and not opt.trips:
        stamp(preloop, opt, 15)
    if opt.stamp and opt.trips:
        lst = [I("s_memtime s[76:77]"), I("s_waitcnt lgkmcnt(0)"), I("s_sub_u32 s76, s76, s64"), I("v_mov_b32 v55, s76"), I(f"v_cmp_eq_u32 vcc, {S(sCNT)}, v54"), I("s_nop 1"), I("v_cndmask_b32 v9, v9, v55, vcc")]
    pre30 = Lin(); stamp(pre30, opt, 0)
    pre31 = Lin(); stamp(pre31, opt, 26)

    def assemble():
        front = pro + preloop.c
        body = lst + it0.code() + it1.code()
        back = pre30.c + it30.code() + pre31.c + it31.code() + epi
        return front, body, back

    def trace(front, body, back, trips=3):
        return front + (body + [tail]) * trips + back
    front, body, back = assemble()
    for _ in range(6):
        if place_waits((body + [tail]) * 3 + back) == 0:
            break
    for x in body:
        if x.kind == 'slot':
            x.frozen = True
    for _ in range(6):
        if place_waits(trace(front, body, back)) == 0:
            break
    for it in (it0, it1, it30, it31):
        it.place_salu()
    front, body, back = assemble()
    fix_hazards_linear(front)
    fix_hazards_linear(back)
    for trips in (1, 2, 3):
        tr = trace(front, body, back, trips)
        place_waits(tr, fix=False)
        bad = check_hazards(tr)
        for b in bad:
            print("HAZARD", b, file=sys.stderr)
        assert not bad
    print("issue-cycle estimate: front", issue_cycles(front), "body/2", issue_cycles(body + body) / 4, "back", issue_cycles(back), file=sys.stderr)
    if opt.nobar:
        body = [x for x in body if x.kind != 'barrier']
    if opt.nowait:
        body = [x for x in body if x.kind != 'slot']
    for k in opt.drop.split(','):
        if k:
            body = [x for x in body if not x.text.startswith(k)]
    if opt.pad:
        front = front + [I(".p2align 6")] + [I("s_nop 0")] * (opt.pad - 1)
        align = I("")
    code = front + [align, head] + body + [tail] + back + careful(opt) + [I("L_end:")]
    return code


HEADER = open(__file__.rsplit('/', 1)[0] + '/header.txt').read() if '/' in __file__ else open('header.txt').read()


def main():
    ap = argparse.ArgumentParser()
    ap.add_argument('-o', default='cdna_kernels/' + NAME + '.s')
    ap.add_argument('--stamp', action='store_true')
    ap.add_argument('--force-slow', action='store_true')
    ap.add_argument('--diag', default='')
    ap.add_argument('--codepf', type=int, default=0x5800)
    ap.add_argument('--bar0', type=int, default=2)
    ap.add_argument('--plan', default='T,K0+Q0,t,V0+Q1,K1+Q2,Q3')
    ap.add_argument('--lat', default='1300,1500,1500,1500,1500,1500')
    ap.add_argument('--marks', action='store_true')
    ap.add_argument('--vmgap', type=int, default=120)
    ap.add_argument('--order', default='Q0,Q1,K,Q2,V,k,Q3')
    ap.add_argument('--sched', type=int, default=2)
    ap.add_argument('--bar', type=int, default=59)
    ap.add_argument('--trips', action='store_true')
    ap.add_argument('--nobar', action='store_true')
    ap.add_argument('--nowait', action='store_true')
    ap.add_argument('--drop', default='')
    ap.add_argument('--pad', type=int, default=0)
    ap.add_argument('--kvmod', default='')
    ap.add_argument('--qmod', default='')
    ap.add_argument('--omod', default='sc1')
    opt = ap.parse_args()
    for k in ('kvmod', 'qmod', 'omod'):
        v = getattr(opt, k)
        setattr(opt, k, ' ' + v.replace(',', ' ') if v else '')
    code = build(opt)
    s = HEADER.replace('@LDS@', str(LDS_BYTES))
    s += f""".amdgcn_target "amdgcn-amd-amdhsa--gfx950"
.text
.globl {NAME}_kernel
.p2align 8
.type {NAME}_kernel,@function
{NAME}_kernel:
"""
    s += render(code)
    s += f"""    s_endpgm
.section .rodata,"a"
.p2align 6
.amdhsa_kernel {NAME}_kernel
  .amdhsa_next_free_vgpr 512
  .amdhsa_next_free_sgpr 102
  .amdhsa_accum_offset 256
  .amdhsa_group_segment_fixed_size 0
  .amdhsa_kernarg_size 80
  .amdhsa_user_sgpr_count 2
  .amdhsa_user_sgpr_kernarg_segment_ptr 1
  .amdhsa_system_sgpr_workgroup_id_x 1
  .amdhsa_float_denorm_mode_32 3
.end_amdhsa_kernel
"""
    open(opt.o, 'w').write(s)


if __name__ == '__main__':
    main()
```
